```python
import torch

def _softmax(x, axis=-1):
    return torch.softmax(x, dim=axis)
def _gelu(x):
    return torch.nn.functional.gelu(x, approximate="tanh")
def _silu(x):
    return torch.nn.functional.silu(x)
def _sigmoid(x):
    return torch.sigmoid(x)
def _layernorm(x, axis=-1, eps=1e-5):
    m = x.mean(dim=axis, keepdim=True)
    v = x.var(dim=axis, keepdim=True, unbiased=False)
    return (x - m) / torch.sqrt(v + eps)
def _scatter_add(tgt, idx, src, axis=0):
    return tgt.clone().index_add_(axis, idx, src)
def _segment_sum(src, seg, n):
    out = torch.zeros((n,) + src.shape[1:], dtype=src.dtype)
    return out.index_add_(0, seg, src)
def _pad(x, pw):
    flat = tuple(v for pair in reversed(pw) for v in pair)
    return torch.nn.functional.pad(x, flat)

kernel_name = 'interleave_layers__sliding_block_cached__dense_activation_gelu__decode'

def setup_inputs():

    _w = (lambda a: (lambda t: t.to(torch.bfloat16) if t.is_floating_point() else t)(torch.as_tensor(a)))
    def _A_setup():
        B, Sq, D = 4, 1, 576
        Hq, Hkv, Sk, Dh = 32, 16, 8192, 128
        assert Hq % Hkv == 0, (Hq, Hkv)
        return {
            "x": _w((lambda *s: torch.randn(*s, dtype=torch.bfloat16) * 0.05)(B, Sq, D)),
            "k_cache": _w((lambda *s: torch.randn(*s, dtype=torch.bfloat16) * 0.8)(B, Hkv, Sk, Dh)),
            "v_cache": _w((lambda *s: torch.randn(*s, dtype=torch.bfloat16) * 1.6)(B, Hkv, Sk, Dh)),
            "wq": _w((lambda *s: torch.randn(*s, dtype=torch.bfloat16) * 0.8)(D, Hq * Dh) * (D ** -0.5)),
            "wo": _w((lambda *s: torch.randn(*s, dtype=torch.bfloat16) * 1.6)(Hq * Dh, D) * ((Hq * Dh) ** -0.5)),
        }
    _A_in = _A_setup()

    def _B_setup():
        B, S, D, F = 4, 1, 576, 4608
        return {
            "x": _w((lambda *s: torch.randn(*s, dtype=torch.bfloat16) * 0.05)(B, S, D)),
            "w1": _w((lambda *s: torch.randn(*s, dtype=torch.bfloat16) * 0.4)(D, F) * (D ** -0.5)),
            "b1": _w((lambda *s: torch.randn(*s, dtype=torch.bfloat16) * 0.4)(F) * 0.01),
            "w2": _w((lambda *s: torch.randn(*s, dtype=torch.bfloat16) * 0.4)(F, D) * (F ** -0.5)),
            "b2": _w((lambda *s: torch.randn(*s, dtype=torch.bfloat16) * 0.4)(D) * 0.01),
        }
    _B_in = _B_setup()

    return {
        "A_x": _A_in["x"],
        "A_k_cache": _A_in["k_cache"],
        "A_v_cache": _A_in["v_cache"],
        "A_wq": _A_in["wq"],
        "A_wo": _A_in["wo"],
        "B_x": _B_in["x"],
        "B_w1": _B_in["w1"],
        "B_b1": _B_in["b1"],
        "B_w2": _B_in["w2"],
        "B_b2": _B_in["b2"],
    }

def reference(A_x, A_k_cache, A_v_cache, A_wq, A_wo, B_x, B_w1, B_b1, B_w2, B_b2):
    def _A_ref(x, k_cache, v_cache, wq, wo):
        B, Sq, D = x.shape
        Hq, Dh = 32, 128
        Hkv, Sk = k_cache.shape[1], k_cache.shape[2]
        W = min(4096, max(256, Sk // 4))
        rep = Hq // Hkv
        q = (lambda x, *d: x.permute(*d))((x @ wq).reshape(B, Sq, Hq, Dh), 0, 2, 1, 3)
        k = (lambda x, n, axis: torch.repeat_interleave(x, n, dim=axis))(k_cache[:, :, Sk - W:, :], rep, axis=1)
        v = (lambda x, n, axis: torch.repeat_interleave(x, n, dim=axis))(v_cache[:, :, Sk - W:, :], rep, axis=1)
        scores = torch.einsum("bhqd,bhkd->bhqk", q, k) * (Dh ** -0.5)
        p = _softmax(scores, axis=-1)
        o = torch.einsum("bhqk,bhkd->bhqd", p, v)
        return (lambda x, *d: x.permute(*d))(o, 0, 2, 1, 3).reshape(B, Sq, Hq * Dh) @ wo

    def _B_ref(x, w1, b1, w2, b2):
        h = torch.einsum("bsd,df->bsf", x, w1) + b1
        h = _gelu(h)
        return torch.einsum("bsf,fd->bsd", h, w2) + b2

    x = A_x
    x = x + _A_ref(_layernorm(x, axis=-1), A_k_cache, A_v_cache, A_wq, A_wo)
    x = x + _B_ref(_layernorm(x, axis=-1), B_w1, B_b1, B_w2, B_b2)
    x = x + _A_ref(_layernorm(x, axis=-1), A_k_cache, A_v_cache, A_wq, A_wo)
    x = x + _B_ref(_layernorm(x, axis=-1), B_w1, B_b1, B_w2, B_b2)
    return x
```

```python
import re

TRANS = ("v_exp_f32", "v_log_f32", "v_rcp_f32", "v_rsq_f32", "v_sqrt_f32", "v_sin_f32", "v_cos_f32")

def split_ops(s):
    out, depth, cur = [], 0, ""
    for ch in s:
        if ch == "[": depth += 1
        if ch == "]": depth -= 1
        if ch == "," and depth == 0:
            out.append(cur.strip()); cur = ""
        else:
            cur += ch
    if cur.strip(): out.append(cur.strip())
    return out

def regs_of(tok):
    tok = tok.strip()
    neg = tok.lstrip("-|").rstrip("|")
    tok = neg
    m = re.fullmatch(r"([vs])(\d+)", tok)
    if m: return {(m.group(1), int(m.group(2)))}
    m = re.fullmatch(r"([vs])\[(\d+):(\d+)\]", tok)
    if m: return {(m.group(1), k) for k in range(int(m.group(2)), int(m.group(3)) + 1)}
    if tok == "vcc": return {("s", 106), ("s", 107)}
    if tok == "vcc_lo": return {("s", 106)}
    if tok == "vcc_hi": return {("s", 107)}
    if tok == "exec": return {("s", 126), ("s", 127)}
    if tok == "exec_lo": return {("s", 126)}
    if tok == "exec_hi": return {("s", 127)}
    return set()

class I:
    __slots__ = ("text", "mn", "cls", "w", "r", "dpp_r", "c_r", "ab_r", "lane_r", "perm_r", "data_r", "trans", "dl", "wide", "ws", "dexact", "cexact")

def decode(text):
    t = text.split(";")[0].strip()
    parts = t.split(None, 1)
    mn = parts[0]
    rest = parts[1] if len(parts) > 1 else ""
    ops = split_ops(rest)
    mods = ""
    if ops:
        lp = ops[-1].split(None, 1)
        ops[-1] = lp[0]
        mods = lp[1] if len(lp) > 1 else ""
    i = I(); i.text = text; i.mn = mn
    i.w = set(); i.r = set(); i.dpp_r = set(); i.c_r = set(); i.ab_r = set(); i.lane_r = set(); i.perm_r = set(); i.data_r = set()
    i.trans = False; i.dl = False; i.wide = False; i.ws = 1; i.dexact = None; i.cexact = None
    R = [regs_of(o) for o in ops]
    base = mn.replace("_e32", "").replace("_e64", "").replace("_dpp", "")
    if mn == "s_nop":
        i.cls = "nop"; i.ws = int(ops[0], 0) + 1
    elif mn.startswith("v_mfma") or mn.startswith("v_smfmac"):
        i.cls = "mfma"
        i.w = R[0]; i.ab_r = R[1] | R[2]; i.c_r = R[3]; i.r = R[1] | R[2] | R[3]
        i.dexact = ops[0]; i.cexact = ops[3]
        if mn.startswith("v_smfmac"):
            i.c_r = R[0]; i.cexact = ops[0]; i.ab_r = R[1] | R[2] | R[3]; i.r |= R[0]
    elif mn.startswith("v_"):
        i.cls = "valu"
        assert not mn.startswith("v_cmpx"), "crude tracker: no v_cmpx"
        assert ("sdwa" not in mn and "sdwa" not in mods) or mn.startswith("v_cmp_")
        if base.startswith("v_permlane") or base == "v_swap_b32":
            i.w = R[0] | R[1]; i.r = R[0] | R[1]
            if base.startswith("v_permlane"): i.perm_r = R[0] | R[1]
        elif base in ("v_add_co_u32", "v_sub_co_u32", "v_subrev_co_u32"):
            i.w = R[0] | R[1]; i.r = set().union(*R[2:])
        elif base in ("v_addc_co_u32", "v_subb_co_u32"):
            i.w = R[0] | R[1]; i.r = set().union(*R[2:])
        else:
            i.w = R[0]; i.r = set().union(*R[1:]) if len(R) > 1 else set()
            if base.startswith("v_fmac") or base.startswith("v_dot2c") or base.startswith("v_pk_fmac") or base == "v_writelane_b32":
                i.r |= R[0]
            if base == "v_cndmask_b32" and len(ops) == 3:
                i.r |= regs_of("vcc")
            if base in ("v_readlane_b32", "v_readfirstlane_b32"):
                i.lane_r = R[1]
        if "_dpp" in mn or "quad_perm" in mods or "row_" in mods:
            i.dpp_r = R[1]
        i.trans = base in TRANS
        i.dl = base.startswith("v_dot")
        if i.dl and len(ops) == 4:
            i.cexact = ops[3]; i.c_r = R[3]; i.ab_r = R[1] | R[2]
    elif mn.startswith("buffer_") or mn.startswith("global_"):
        i.cls = "vmem"
        if "load" in mn:
            i.w = R[0]; i.r = set().union(*R[1:])
        else:
            if mn.startswith("buffer_"):
                i.data_r = R[0]
            else:
                i.data_r = R[1]
            i.r = set().union(*R)
            i.wide = mn.endswith("x3") or mn.endswith("x4")
    elif mn.startswith("ds_"):
        i.cls = "ds"
        if "read" in mn:
            i.w = R[0]; i.r = set().union(*R[1:])
        else:
            i.r = set().union(*R)
    else:
        assert mn.startswith("s_"), text
        i.cls = "salu"
    return i

def need(p, c):
    n = 0
    pv = {x for x in p.w if x[0] == "v"}
    ps = {x for x in p.w if x[0] == "s"}
    if p.cls == "valu":
        if c.cls == "mfma" and pv & c.r: n = max(n, 2)
        if c.cls == "valu":
            if pv & c.dpp_r: n = max(n, 2)
            if pv & c.perm_r: n = max(n, 2)
            if pv & c.lane_r: n = max(n, 1)
            if p.trans and pv & c.r: n = max(n, 1)
            if ps & c.r:
                n = max(n, 4 if c.mn.startswith(("v_readlane", "v_writelane")) else 2)
        if c.cls == "vmem" and ps & c.r: n = max(n, 5)
        if c.cls == "salu" and ps: n = max(n, 0)
        if p.trans and c.cls in ("vmem", "ds") and pv & c.r: n = max(n, 1)
        if p.dl:
            if c.cls in ("valu", "mfma", "vmem", "ds") and pv & (c.r | c.w):
                if c.dl and c.mn == p.mn and not (pv & c.ab_r) and (pv == c.c_r):
                    pass
                else:
                    n = max(n, 3)
    if p.cls == "mfma":
        if c.cls == "mfma":
            if pv & c.ab_r: n = max(n, 8)
            if pv & c.c_r and c.cexact != p.dexact: n = max(n, 6)
            if pv & c.w and c.dexact != p.dexact: n = max(n, 8)
            if pv & c.w and not (pv & c.c_r): n = max(n, 8)
        elif c.cls in ("valu", "vmem", "ds"):
            if pv & (c.r | c.w): n = max(n, 8)
        if c.cls == "valu" and (p.c_r & c.w): n = max(n, 3)
    if p.cls == "vmem" and p.wide:
        if p.data_r & c.w: n = max(n, 2)
    return n

class Asm:
    def __init__(self):
        self.out = []
        self.hist = []
        self.pending = {}
        self.labels = {}
        self.ins = []
        self.reach = True
        self.vm = []
        self.conds = []
        self.uid = 0
        self.nnops = 0
    def raw(self, s): self.out.append(s)
    def c(self, s): self.out.append("    ; " + s)
    def _age(self, ws):
        self.hist = [(p, a + ws) for p, a in self.hist if a + ws < 9]
    def _deficit(self, hist, ins):
        d = 0
        for p, a in hist:
            d = max(d, need(p, ins) - a)
        return d
    def _push(self, ins):
        self._age(ins.ws)
        if ins.cls in ("valu", "mfma") or (ins.cls == "vmem" and ins.wide):
            self.hist.append((ins, 0))
        self.ins.append(ins)
        self.out.append("    " + ins.text)
    def __call__(self, text, tag=None):
        for line in text.split("\n"):
            line = line.strip()
            if not line: continue
            self.one(line, tag)
    def one(self, text, tag=None):
        ins = decode(text)
        mn = ins.mn
        if mn in ("s_branch",) or mn.startswith("s_cbranch"):
            lab = text.split()[1]
            if lab in self.labels:
                h = [(p, a + 1) for p, a in self.hist]
                worst = 0; acc = 0
                for k in range(self.labels[lab], len(self.ins)):
                    q = self.ins[k]
                    hh = [(p, a + acc) for p, a in h]
                    worst = max(worst, self._deficit(hh, q))
                    acc += q.ws
                    if acc > 9: break
                if worst: self._push(decode(f"s_nop {worst-1}")); self.nnops += worst
                self._push(ins)
            else:
                self._push(ins)
                self.pending.setdefault(lab, []).append(list(self.hist))
            if mn == "s_branch":
                self.hist = []; self.reach = False
            return
        d = self._deficit(self.hist, ins)
        if d > 0:
            self._push(decode(f"s_nop {d-1}")); self.nnops += d
        self._push(ins)
        if ins.cls == "vmem":
            self.vm.append((tag, frozenset(self.conds)))
        if mn == "s_endpgm":
            self.hist = []; self.reach = False
    def label(self, lab):
        assert lab not in self.labels, lab
        hs = self.pending.pop(lab, [])
        for h in hs: self.hist = self.hist + h
        self.reach = True
        self.labels[lab] = len(self.ins)
        self.out.append(lab + ":")
    def L(self, stem="L"):
        self.uid += 1
        return f"{stem}_{self.uid}"
    def push_cond(self, name): self.conds.append(name)
    def pop_cond(self): self.conds.pop()
    def vm_after(self, tag):
        idx = max(k for k, (t, _) in enumerate(self.vm) if t == tag)
        known = set(self.conds) | set(self.vm[idx][1])
        return sum(1 for t, c in self.vm[idx + 1:] if c <= known)
    def wait_vm(self, tag):
        n = min(63, self.vm_after(tag))
        self(f"s_waitcnt vmcnt({n})")
        return n
    def text(self):
        assert not self.pending, self.pending.keys()
        return "\n".join(self.out) + "\n"
```

```python
import sys, math, struct
sys.path.insert(0, "gen")
from asmlib import Asm

NAME = "interleave_layers__sliding_block_cached__dense_activation_gelu__decode"
FLAGS = 0x1000; Q0 = 0x10000; AREA_A = 0x20000; AREA_B = 0xA0000; TRACE = 0x120000; WS_SIZE = 0x160000
O_OFF = [0, 16384]; Q1_OFF = 32768; X1_OFF = [36864, 46080]; X2_OFF = 41472; H_OFF = [50688, 55296]
LSE_OFF = [59904, 60160]; XS1_OFF = [60416, 62464]; XS2_OFF = 61440
SLOT_PO = [0, 1]; SLOT_P2 = [2, 3]; SLOT_SZ = 131072
L_Q = 0; L_ST = 512; L_MODE = 640; L_O = 1024; L_WO = 9216; L_T = 13312; LDS_SIZE = 20480
S0, S1, S2 = 56, 80, 104
KR, VR = 128, 192
def f2u(f): return struct.unpack("<I", struct.pack("<f", f))[0]
LOG2E = 1.4426950408889634
QSCALE = (128 ** -0.5) * LOG2E

def gen(P):
    A = Asm()
    trace = P.get("trace", 0)
    stop = P.get("stop", 99)
    RS = P.get("rstart", 6)
    def stamp(k, name=""):
        if trace:
            A(f"s_memrealtime s[{74+2*k}:{75+2*k}]")
            A.c(f"stamp {k} {name}")
    class Cond:
        def __init__(s, name, test): s.name = name; s.test = test
        def __enter__(s):
            s.l = A.L("Lskip")
            A(s.test); A(f"s_cbranch_scc0 {s.l}"); A.push_cond(s.name)
        def __exit__(s, *a):
            A.pop_cond(); A.label(s.l)
    isWQ = lambda: Cond("wq", "s_cmp_lt_u32 s5, 16")
    isWO = lambda: Cond("wo", "s_cmp_lt_u32 s10, 18")
    isW1 = lambda: Cond("w1", "s_cmp_lt_u32 s11, 18")
    isW2 = lambda: Cond("w2", "s_cmp_lt_u32 s12, 18")
    isR = lambda: Cond("r", "s_cmp_lt_u32 s13, 18")
    wlt = lambda n: Cond(f"w<{n}", f"s_cmp_lt_u32 s3, {n}")
    weq = lambda n: Cond(f"w={n}", f"s_cmp_eq_u32 s3, {n}")
    def setexec(lo, hi):
        A(f"s_mov_b32 exec_lo, {lo:#x}\ns_mov_b32 exec_hi, {hi:#x}")
    def fullexec(): A("s_mov_b64 exec, -1")
    def hstore(text):
        l1 = A.L("Lsl"); l2 = A.L("Lsd")
        A(f"s_cmp_lg_u32 s9, 0\ns_cbranch_scc1 {l1}")
        A(text)
        A(f"s_branch {l2}")
        A.label(l1)
        A.push_cond("never"); A(text + " sc1"); A.pop_cond()
        A.label(l2)
    def poll(loads, regs, tmp):
        lp = A.L("Lpoll"); ld = A.L("Lpd")
        A.label(lp)
        for t in loads: A(t)
        A("s_waitcnt vmcnt(0)")
        rs = list(regs)
        first = True
        while rs:
            if first:
                if len(rs) >= 3: A(f"v_max3_u32 v{tmp}, v{rs[0]}, v{rs[1]}, v{rs[2]}"); rs = rs[3:]
                else: A(f"v_max_u32 v{tmp}, v{rs[0]}, v{rs[1]}"); rs = rs[2:]
                first = False
            elif len(rs) >= 2: A(f"v_max3_u32 v{tmp}, v{tmp}, v{rs[0]}, v{rs[1]}"); rs = rs[2:]
            else: A(f"v_max_u32 v{tmp}, v{tmp}, v{rs[0]}"); rs = rs[1:]
        A(f"v_cmp_eq_u32 vcc, -1, v{tmp}")
        A(f"s_cbranch_vccz {ld}")
        A(f"s_sub_u32 s8, s8, 1\ns_cbranch_scc0 {lp}\ns_mov_b32 s8, 0")
        A.label(ld)
    def getT(vE):
        A(f"v_readfirstlane_b32 s7, v{vE}")
        A("s_nop 0\ns_add_u32 s7, s7, 1\ns_mul_i32 s6, s7, 0x01010101")

    hdr = open(f"cdna_kernels/{NAME}.s.ref").read().split("\n")
    for ln in hdr:
        if ln.startswith("; @launch"): break
        A.raw(ln)
    A.raw(f"; @launch grid=(256,1,1) block=(512,1,1) lds={LDS_SIZE}")
    A.raw('.amdgcn_target "amdgcn-amd-amdhsa--gfx950"')
    A.raw(f".text\n.globl {NAME}_kernel\n.p2align 8\n.type {NAME}_kernel,@function\n{NAME}_kernel:")
    A("s_cmp_ge_u32 s2, 256\ns_cbranch_scc1 L_end")
    A("s_load_dwordx2 s[56:57], s[0:1], 96\ns_load_dwordx16 s[32:47], s[0:1], 0\ns_load_dwordx8 s[48:55], s[0:1], 64")
    if trace:
        for k in range(1, 14): A(f"s_mov_b32 s{74+2*k}, 0")
    stamp(0, "start")
    A("v_mov_b32 v6, 0\nv_mov_b32 v106, 0")
    A("v_lshrrev_b32 v1, 6, v0\nv_and_b32 v0, 63, v0\nv_readfirstlane_b32 s3, v1")
    A("v_and_b32 v1, 15, v0\nv_lshrrev_b32 v2, 4, v0")
    A("s_and_b32 s4, s2, 7\ns_lshr_b32 s5, s2, 3")
    A("s_mov_b32 s8, 150000\ns_mov_b32 s9, 1")
    A(f"s_sub_u32 s10, s5, 16\ns_and_b32 s10, s10, 31\ns_sub_u32 s11, s5, 2\ns_and_b32 s11, s11, 31")
    A(f"s_sub_u32 s12, s5, 20\ns_and_b32 s12, s12, 31\ns_sub_u32 s13, s5, {RS}\ns_and_b32 s13, s13, 31")
    A(f"s_lshl_b32 s14, s4, 16\ns_add_u32 s14, s14, {AREA_B}")
    A("s_mov_b32 s58, 0x05040100\ns_mov_b32 s59, 0x07060302")
    A("s_bfe_u32 s64, s5, 0x20001\ns_and_b32 s65, s5, 1\ns_lshr_b32 s66, s5, 3")
    A("s_getreg_b32 s67, hwreg(HW_REG_XCC_ID)\ns_and_b32 s67, s67, 15")
    A("v_and_b32 v4, 1, v0\nv_lshlrev_b32 v4, 4, v4\nv_mov_b32 v3, 0xffff\nv_lshlrev_b32 v3, v4, v3")
    A("s_and_b32 s15, s5, 7\ns_xor_b32 s15, s15, s3\ns_lshl_b32 s15, s15, 12")
    for t in range(4):
        A(f"s_xor_b32 s68, s66, {t}\ns_lshl_b32 s68, s68, 15\ns_add_u32 s{60+t}, s15, s68")
    A("s_waitcnt lgkmcnt(0)")
    A(f"s_mov_b32 s16, s56\ns_mov_b32 s17, s57\ns_mov_b32 s18, {WS_SIZE}\ns_mov_b32 s19, 0x20000")
    A("buffer_load_dword v55, off, s[16:19], 0 sc1", tag="E")
    A("s_lshl_b32 s68, s64, 25\ns_lshl_b32 s69, s4, 22\ns_add_u32 s68, s68, s69\ns_lshl_b32 s69, s65, 21\ns_add_u32 s68, s68, s69")
    A(f"s_lshl_b32 s69, s66, 17\ns_add_u32 s68, s68, s69\ns_add_u32 s68, s68, {6144*256}")
    A("s_add_u32 s20, s34, s68\ns_addc_u32 s21, s35, 0\ns_mov_b32 s22, 0x20000\ns_mov_b32 s23, 0x20000")
    A("s_add_u32 s24, s36, s68\ns_addc_u32 s25, s37, 0\ns_mov_b32 s26, 0x20000\ns_mov_b32 s27, 0x20000")

    with weq(7):
        A("v_mov_b32 v4, -1\nv_mov_b32 v5, -1\nv_mov_b32 v6, -1\nv_mov_b32 v7, -1")
        A("v_lshrrev_b32 v8, 5, v0\nv_lshlrev_b32 v8, 17, v8\nv_and_b32 v9, 31, v0\nv_lshl_add_u32 v8, v9, 4, v8")
        A(f"s_lshl_b32 s68, s5, 12\ns_lshl_b32 s69, s4, 9\ns_add_u32 s68, s68, s69\ns_add_u32 s68, s68, {AREA_A}\ns_add_u32 s69, s68, {2*SLOT_SZ}")
        A("buffer_store_dwordx4 v[4:7], v8, s[16:19], s68 offen sc1")
        A("buffer_store_dwordx4 v[4:7], v8, s[16:19], s69 offen sc1")
        A("v_lshlrev_b32 v9, 4, v0\ns_lshl_b32 s68, s5, 11\ns_add_u32 s68, s68, s14")
        A("buffer_store_dwordx4 v[4:7], v9, s[16:19], s68 offen sc1")
        A("buffer_store_dwordx4 v[4:7], v9, s[16:19], s68 offen offset:1024 sc1")
        A("s_waitcnt vmcnt(0)")
        getT(55)
        A("v_mov_b32 v4, s6\nv_mov_b32 v5, s67\nv_mov_b32 v6, s6\nv_mov_b32 v7, s67")
        A(f"s_lshl_b32 s68, s4, 5\ns_add_u32 s68, s68, s5\ns_lshl_b32 s68, s68, 7\ns_add_u32 s68, s68, {FLAGS}")
        A("s_mov_b64 exec, 1")
        A("buffer_store_dwordx4 v[4:7], off, s[16:19], s68 sc1")
        fullexec()

    def srd_tmp(ptr, offs, total):
        A(f"s_add_u32 s28, s{ptr}, {offs}\ns_addc_u32 s29, s{ptr+1}, 0\ns_sub_u32 s30, {total}, {offs}\ns_mov_b32 s31, 0x20000")
    def w_load(base, stride, nsteps, tag):
        rows = 32 * nsteps
        A(f"v_mul_u32_u24 v44, {8*stride}, v2\nv_lshl_add_u32 v44, v1, 2, v44\ns_mul_i32 s15, s3, {rows*stride}\nv_add_u32 v44, s15, v44")
        for s in range(nsteps):
            for ii in range(8):
                dst = base + 8 * s + (ii >> 1) + (4 if ii & 1 else 0)
                ro = (32 * s + ii) * stride
                if stride * 3 < 4096:
                    if ii % 4 == 0: A(f"s_mov_b32 s15, {ro}")
                    A(f"buffer_load_dword v{dst}, v44, s[28:31], s15 offen offset:{(ii % 4) * stride}", tag=tag)
                else:
                    A(f"s_mov_b32 s15, {ro}")
                    A(f"buffer_load_dword v{dst}, v44, s[28:31], s15 offen", tag=tag)
    def w_perm(base, nsteps):
        for s in range(nsteps):
            for q in range(4):
                a = base + 8 * s + q; b = a + 4; t = 52 + (q & 1)
                A(f"v_perm_b32 v{t}, v{b}, v{a}, s59\nv_perm_b32 v{a}, v{b}, v{a}, s58\nv_mov_b32 v{b}, v{t}")
    def ones_preset():
        for k in range(8, 20): A(f"v_mov_b32 v{k}, 0x3f803f80")
    def t32_mma(base):
        for s in range(3):
            for f in range(2):
                d = 24 + 4 * f
                A(f"v_mfma_f32_16x16x32_bf16 v[{d}:{d+3}], v[{base+8*s+4*f}:{base+8*s+4*f+3}], v[{8+4*s}:{11+4*s}], " + ("0" if s == 0 else f"v[{d}:{d+3}]"))
        setexec(0x00ff00ff, 0x00ff00ff)
        A("ds_write_b128 v45, v[24:27]\nds_write_b128 v45, v[28:31] offset:512")
        fullexec()
        A("s_waitcnt lgkmcnt(0)")
    def t32_addr():
        A(f"v_lshlrev_b32 v45, 6, v1\nv_lshl_add_u32 v45, v2, 4, v45\ns_lshl_b32 s15, s3, 10\ns_add_u32 s15, s15, {L_T}\nv_add_u32 v45, s15, v45")
    def row_reduce2(a, b):
        for n in (8, 4, 2, 1):
            A(f"v_add_f32_dpp v{a}, v{a}, v{a} row_ror:{n} row_mask:0xf bank_mask:0xf")
            A(f"v_add_f32_dpp v{b}, v{b}, v{b} row_ror:{n} row_mask:0xf bank_mask:0xf")
    def stats_finish():
        A(f"v_mul_f32 v48, {f2u(1/576):#x}, v48\nv_mul_f32 v49, {f2u(1/576):#x}, v49")
        A("v_fma_f32 v49, -v48, v48, v49")
        A(f"v_add_f32 v49, {f2u(1e-5):#x}, v49\nv_rsq_f32 v49, v49")
    def t32_final_read():
        A(f"v_lshlrev_b32 v46, 2, v0\nv_add_u32 v46, {L_T}, v46")
        A("s_barrier")
        for w in range(6):
            A(f"ds_read2st64_b32 v[{8+4*w}:{9+4*w}], v46 offset0:{4*w} offset1:{4*w+2}")
            A(f"ds_read2st64_b32 v[{10+4*w}:{11+4*w}], v46 offset0:{4*w+1} offset1:{4*w+3}")
        for w in range(1, 6):
            A(f"s_waitcnt lgkmcnt({2*(5-w)})")
            A(f"v_pk_add_f32 v[8:9], v[8:9], v[{8+4*w}:{9+4*w}]\nv_pk_add_f32 v[10:11], v[10:11], v[{10+4*w}:{11+4*w}]")
        A("v_fma_f32 v8, -v48, v10, v8\nv_fma_f32 v9, -v48, v11, v9")

    def k_loads(ts):
        for t in ts:
            for s in range(4):
                A(f"buffer_load_dwordx4 v[{KR+16*t+4*s}:{KR+16*t+4*s+3}], v50, s[20:23], s{60+t} offen offset:{64*s} nt", tag=f"K{t}")
    A("v_and_b32 v50, 3, v1\nv_lshlrev_b32 v50, 10, v50\nv_lshrrev_b32 v51, 2, v1\nv_lshl_add_u32 v50, v51, 8, v50\nv_lshl_add_u32 v50, v2, 4, v50\nv_lshlrev_b32 v51, 4, v0")
    kearly = P.get("kearly", 0)
    with isWQ():
        with wlt(6):
            A("s_lshl_b32 s68, s4, 10\ns_lshl_b32 s69, s5, 6\ns_add_u32 s68, s68, s69")
            srd_tmp(38, "s68", 4718592)
            w_load(S0, 8192, 3, "wq")
            ones_preset()
            A("s_mov_b32 s28, s32\ns_mov_b32 s29, s33\ns_mov_b32 s30, 4608\ns_mov_b32 s31, 0x20000")
            A("v_mul_u32_u24 v44, 1152, v1\nv_lshl_add_u32 v44, v2, 4, v44\ns_mul_i32 s15, s3, 192")
            setexec(0x000f000f, 0x000f000f)
            for s in range(3):
                A(f"buffer_load_dwordx4 v[{8+4*s}:{11+4*s}], v44, s[28:31], s15 offen offset:{64*s}", tag="x0f")
            fullexec()
            t32_addr()
        with weq(6):
            A("s_mov_b32 s28, s32\ns_mov_b32 s29, s33\ns_mov_b32 s30, 4608\ns_mov_b32 s31, 0x20000")
            A("v_mul_u32_u24 v44, 1152, v2\nv_lshl_add_u32 v44, v1, 4, v44")
            for k in range(24, 28): A(f"v_mov_b32 v{k}, 0")
            for u in range(4):
                A(f"buffer_load_dwordx4 v[{8+4*u}:{11+4*u}], v44, s[28:31], 0 offen offset:{256*u}", tag="x0s")
            setexec(0x00ff00ff, 0x00ff00ff)
            A("buffer_load_dwordx4 v[24:27], v44, s[28:31], 0 offen offset:1024", tag="x0s")
            fullexec()
        if kearly: k_loads(range(kearly))
        with wlt(6):
            A.wait_vm("x0f")
            w_perm(S0, 3)
            t32_mma(S0)
            A("s_barrier")
        with weq(7):
            A("s_barrier")
        with weq(6):
            A.wait_vm("x0s")
            A("v_mov_b32 v28, 0x3f803f80\nv_mov_b32 v48, 0\nv_mov_b32 v49, 0")
            for k in range(8, 28):
                A(f"v_dot2_f32_bf16 v48, v{k}, v28, v48")
            for k in range(8, 28):
                A(f"v_dot2_f32_bf16 v49, v{k}, v{k}, v49")
            row_reduce2(48, 49)
            stats_finish()
            getT(55)
            A(f"v_mul_f32 v49, {f2u(QSCALE):#x}, v49")
            A("v_and_b32 v47, 1, v0\nv_lshlrev_b32 v47, 4, v47\nv_lshrrev_b32 v47, v47, s6")
            A("s_mov_b32 s68, 0x03020104\ns_mov_b32 s69, 0x03020105")
            A(f"v_lshlrev_b32 v44, 11, v2\nv_lshl_add_u32 v44, v1, 3, v44\ns_lshl_b32 s70, s4, 13\ns_lshl_b32 s71, s5, 7\ns_add_u32 s70, s70, s71\ns_add_u32 s70, s70, {Q0}")
            t32_final_read()
            A("v_mul_f32 v8, v49, v8\nv_mul_f32 v9, v49, v9")
            A("v_perm_b32 v8, v47, v8, s68\nv_perm_b32 v9, v47, v9, s69")
            A("buffer_store_dwordx2 v[8:9], v44, s[16:19], s70 offen sc1")
            stamp(4, "q0 stored")
    if kearly:
        with Cond("nwq", "s_cmp_ge_u32 s5, 16"):
            k_loads(range(kearly))
        k_loads(range(kearly, 4))
    else:
        k_loads(range(4))
    with weq(0):
        A(f"s_lshl_b32 s70, s4, 13\ns_lshl_b32 s71, s64, 11\ns_add_u32 s70, s70, s71\ns_lshl_b32 s71, s65, 10\ns_add_u32 s70, s70, s71\ns_add_u32 s70, s70, {Q0}")
        A("buffer_load_dwordx4 v[4:7], v51, s[16:19], s70 offen sc1", tag="q0")
    def wo_base_regions(fn):
        with isWO():
            with Cond("wo_hi", "s_cmp_ge_u32 s5, 16"): fn(S0)
            with Cond("wo_lo", "s_cmp_lt_u32 s5, 16"): fn(S1)
    def wo_ld(base):
        A(f"s_mul_i32 s68, s4, {512*1152}\ns_lshl_b32 s69, s10, 6\ns_add_u32 s68, s68, s69")
        srd_tmp(40, "s68", 4718592)
        w_load(base, 1152, 2, "wo")
    wo_base_regions(wo_ld)
    with isW1():
        with wlt(6):
            A("s_mul_i32 s68, s4, 1152\ns_lshl_b32 s69, s11, 6\ns_add_u32 s68, s68, s69")
            srd_tmp(44, "s68", 5308416)
            w_load(S1, 9216, 3, "w1")
        with weq(6):
            A("s_mul_i32 s68, s4, 1152\ns_lshl_b32 s69, s11, 6\ns_add_u32 s68, s68, s69")
            srd_tmp(46, "s68", 9216)
            A("v_lshlrev_b32 v44, 2, v1")
            A(f"buffer_load_dword v{S2}, v44, s[28:31], 0 offen", tag="b1")
    with isW2():
        with wlt(6):
            A(f"s_mul_i32 s68, s4, {576*1152}\ns_lshl_b32 s69, s12, 6\ns_add_u32 s68, s68, s69")
            srd_tmp(48, "s68", 5308416)
            w_load(S2, 1152, 3, "w2")
    with isR():
        with weq(7):
            A("v_and_b32 v44, 7, v0\nv_lshlrev_b32 v44, 3, v44\nv_lshrrev_b32 v45, 5, v0\nv_lshl_add_u32 v44, v45, 2, v44")
            A("s_lshl_b32 s68, s13, 6")
            srd_tmp(50, "s68", 1152)
            A(f"buffer_load_dword v{S2+1}, v44, s[28:31], 0 offen", tag="b2")
            A(f"v_bfe_u32 v45, v0, 3, 2\nv_mul_u32_u24 v45, 1152, v45\nv_add3_u32 v{S2+2}, v44, v45, s68")
            A("s_mov_b32 s28, s32\ns_mov_b32 s29, s33\ns_mov_b32 s30, 4608\ns_mov_b32 s31, 0x20000")
            A(f"buffer_load_dword v{S2}, v{S2+2}, s[28:31], 0 offen", tag="xres")
    for t in range(4):
        for r in range(4):
            A(f"buffer_load_dwordx4 v[{VR+16*t+4*r}:{VR+16*t+4*r+3}], v51, s[24:27], s{60+t} offen offset:{1024*r} nt", tag=f"V{t}{r}")
    stamp(1, "loads issued")
    with weq(7):
        A("v_and_b32 v8, 31, v0\ns_lshl_b32 s68, s4, 5\nv_add_u32 v8, s68, v8")
        A("v_and_b32 v9, 7, v0\nv_lshlrev_b32 v9, 5, v9\nv_add_u32 v9, s13, v9")
        A("s_mov_b32 exec_lo, 0\ns_mov_b32 exec_hi, 0xff\nv_mov_b32 v8, v9")
        fullexec()
        A(f"v_lshlrev_b32 v6, 7, v8\ns_mov_b32 s70, {FLAGS}")
        A("buffer_load_dwordx2 v[4:5], v6, s[16:19], s70 offen sc1", tag="fl")
    with weq(0):
        A.wait_vm("q0")
        getT(55)
        lp = A.L("Lq0"); ld = A.L("Lq0d")
        A("s_mov_b32 s68, 0x0c0c0400\ns_mov_b32 s69, 0x04000c0c")
        A.label(lp)
        A("v_perm_b32 v8, v5, v4, s68\nv_perm_b32 v9, v7, v6, s69\nv_or_b32 v8, v8, v9")
        A("v_cmp_ne_u32 vcc, s6, v8")
        A(f"s_cbranch_vccz {ld}")
        A(f"s_sub_u32 s8, s8, 1\ns_cbranch_scc1 {ld}x")
        A.push_cond("never")
        A("buffer_load_dwordx4 v[4:7], v51, s[16:19], s70 offen sc1")
        A.pop_cond()
        A(f"s_waitcnt vmcnt(0)\ns_branch {lp}")
        A.label(ld + "x")
        A("s_mov_b32 s8, 0")
        A.label(ld)
        A("v_cvt_pk_bf16_f32 v8, v4, v5\nv_cvt_pk_bf16_f32 v9, v6, v7\nv_lshlrev_b32 v10, 3, v0")
        A(f"ds_write_b64 v10, v[8:9] offset:{L_Q}\ns_waitcnt lgkmcnt(0)")
    def wo_pm(base):
        A.wait_vm("wo"); w_perm(base, 2)
    wo_base_regions(wo_pm)
    with isW1():
        with wlt(6):
            A.wait_vm("w1"); w_perm(S1, 3)
    with isW2():
        with wlt(6):
            A.wait_vm("w2"); w_perm(S2, 3)

    def att(L):
        for k in range(44, 52): A(f"v_mov_b32 v{k}, 0")
        A(f"v_bfe_u32 v54, v0, 1, 1\nv_lshlrev_b32 v54, 8, v54\nv_lshl_add_u32 v54, v2, 4, v54")
        A("s_barrier")
        stamp(2 + L, "att start")
        for s in range(4):
            A(f"ds_read_b128 v[{8+4*s}:{11+4*s}], v54 offset:{L_Q+64*s}")
        def sel(t, r):
            A(f"v_mov_b32_dpp v{24+r}, v{24+4*t+r} quad_perm:[0,1,2,3] row_mask:0xf bank_mask:{1<<t:#x}")
        for t in range(4):
            if L == 0: A.wait_vm(f"K{t}")
            for s in range(4):
                if t == 0: A(f"s_waitcnt lgkmcnt({3-s})")
                d = 24 + 4 * t
                A(f"v_mfma_f32_16x16x32_bf16 v[{d}:{d+3}], v[{KR+16*t+4*s}:{KR+16*t+4*s+3}], v[{8+4*s}:{11+4*s}], " + ("0" if s == 0 else f"v[{d}:{d+3}]"))
                if t == 3 and s < 2:
                    sel(1, 2 * s); sel(1, 2 * s + 1)
                if t == 3 and s >= 2:
                    sel(2, 2 * (s - 2)); sel(2, 2 * (s - 2) + 1)
        for r in range(4): sel(3, r)
        A("v_max3_f32 v52, v24, v25, v26\nv_max_f32 v52, v52, v27")
        A("v_max_f32_dpp v52, v52, v52 row_ror:4 row_mask:0xf bank_mask:0xf")
        A("v_max_f32_dpp v52, v52, v52 row_ror:8 row_mask:0xf bank_mask:0xf")
        A("v_mov_b32 v54, v52\nv_permlane16_swap_b32 v54, v52\nv_max_f32 v52, v52, v54")
        A("v_mov_b32 v54, v52\nv_permlane32_swap_b32 v54, v52\nv_max_f32 v52, v52, v54")
        for r in range(4): A(f"v_sub_f32 v{24+r}, v{24+r}, v52")
        for r in range(4): A(f"v_exp_f32 v{24+r}, v{24+r}")
        for r in range(4): A(f"v_cvt_pk_bf16_f32 v{28+r}, v{24+r}, v{24+r}")
        def abuild(k):
            t, r = divmod(k, 4); buf = 44 + 4 * (k & 1)
            for a in range(4):
                n = 4 * ((a - t) & 3)
                mod = f"row_ror:{n}" if n else "quad_perm:[0,1,2,3]"
                A(f"v_and_b32_dpp v{buf+a}, v{28+r}, v3 {mod} row_mask:0xf bank_mask:{1<<a:#x}")
        extra = ["v_add_f32 v53, v24, v25", "v_add_f32 v54, v26, v27", "v_add_f32 v53, v53, v54",
                 "v_add_f32_dpp v53, v53, v53 row_ror:4 row_mask:0xf bank_mask:0xf",
                 "v_add_f32_dpp v53, v53, v53 row_ror:8 row_mask:0xf bank_mask:0xf",
                 "v_mov_b32 v54, v53", "v_permlane16_swap_b32 v54, v53", "v_add_f32 v53, v53, v54",
                 "v_mov_b32 v54, v53", "v_permlane32_swap_b32 v54, v53", "v_add_f32 v53, v53, v54",
                 f"v_lshlrev_b32 v8, 4, v0", "s_lshl_b32 s15, s3, 10", "v_add_u32 v8, s15, v8",
                 "v_lshlrev_b32 v9, 5, v0", "s_lshl_b32 s15, s3, 3", "v_add_u32 v9, s15, v9"]
        abuild(0); abuild(1)
        for k in range(16):
            t, r = divmod(k, 4); buf = 44 + 4 * (k & 1)
            if L == 0: A.wait_vm(f"V{t}{r}")
            A(f"v_mfma_f32_16x16x32_bf16 v[40:43], v[{buf}:{buf+3}], v[{VR+16*t+4*r}:{VR+16*t+4*r+3}], " + ("0" if k == 0 else "v[40:43]"))
            if k + 2 < 16: abuild(k + 2)
            for _ in range(2 if k >= 12 else 1):
                if extra: A(extra.pop(0))
        while extra: A(extra.pop(0))
        if L == 0: stamp(13, "pv done")
        A("s_mov_b64 exec, 5")
        A(f"ds_write_b64 v9, v[52:53] offset:{L_ST}")
        fullexec()
        A(f"ds_write_b128 v8, v[40:43] offset:{L_O}")
        if L == 0:
            with weq(7):
                lp = A.L("Lfl"); ld = A.L("Lfld")
                A.wait_vm("fl")
                A.label(lp)
                A("v_cmp_ne_u32 vcc, s6, v4")
                A(f"s_cbranch_vccz {ld}")
                A(f"s_sub_u32 s8, s8, 1\ns_cbranch_scc1 {ld}x")
                A.push_cond("never")
                A("buffer_load_dwordx2 v[4:5], v6, s[16:19], s70 offen sc1")
                A.pop_cond()
                A(f"s_waitcnt vmcnt(0)\ns_branch {lp}")
                A.label(ld + "x")
                A("s_mov_b32 s8, 0")
                A.label(ld)
                A("v_cmp_ne_u32 vcc, s67, v5")
                A("s_nop 3\nv_mov_b32 v4, vcc_lo\nv_mov_b32 v5, 0")
                if P.get("force_slow"): A("v_mov_b32 v4, 1")
                A(f"ds_write_b32 v5, v4 offset:{L_MODE}")
        A("s_waitcnt lgkmcnt(0)")
        A(f"v_lshlrev_b32 v46, 4, v0\ns_lshl_b32 s15, s3, 3\nv_add_u32 v46, s15, v46")
        A(f"v_and_b32 v47, 7, v0\nv_lshlrev_b32 v47, 3, v47\ns_lshl_b32 s15, s3, 6\nv_add_u32 v47, s15, v47")
        A("s_barrier")
        if L == 0:
            A(f"v_mov_b32 v5, 0\nds_read_b32 v4, v5 offset:{L_MODE}")
        with wlt(2):
            A(f"ds_read_b64 v[52:53], v47 offset:{L_ST}")
            for w in range(8):
                A(f"ds_read_b64 v[{8+2*w}:{9+2*w}], v46 offset:{L_O+1024*w}")
            A("s_lshl_b32 s68, s65, 1\ns_add_u32 s68, s68, s3")
            A(f"s_lshl_b32 s69, s68, 12\ns_lshl_b32 s70, s64, 10\ns_add_u32 s69, s69, s70\ns_lshl_b32 s70, s66, 8\ns_add_u32 s69, s69, s70\ns_add_u32 s69, s69, s14\ns_add_u32 s69, s69, {O_OFF[L]}")
            A(f"s_lshl_b32 s70, s68, 6\ns_lshl_b32 s71, s64, 4\ns_add_u32 s70, s70, s71\ns_lshl_b32 s71, s66, 2\ns_add_u32 s70, s70, s71\ns_add_u32 s70, s70, s14\ns_add_u32 s70, s70, {LSE_OFF[L]}")
            A("v_lshlrev_b32 v44, 4, v1\nv_lshl_add_u32 v44, v2, 2, v44")
            A("s_waitcnt lgkmcnt(8)")
            A("v_max_f32_dpp v54, v52, v52 quad_perm:[1,0,3,2] row_mask:0xf bank_mask:0xf")
            A("v_max_f32_dpp v54, v54, v54 quad_perm:[2,3,0,1] row_mask:0xf bank_mask:0xf")
            A("v_max_f32_dpp v54, v54, v54 row_half_mirror row_mask:0xf bank_mask:0xf")
            A("v_sub_f32 v52, v52, v54\nv_exp_f32 v52, v52\nv_mul_f32 v53, v53, v52")
            A("v_add_f32_dpp v53, v53, v53 quad_perm:[1,0,3,2] row_mask:0xf bank_mask:0xf")
            A("v_add_f32_dpp v53, v53, v53 quad_perm:[2,3,0,1] row_mask:0xf bank_mask:0xf")
            A("v_add_f32_dpp v53, v53, v53 row_half_mirror row_mask:0xf bank_mask:0xf")
            A("v_rcp_f32 v45, v53\nv_log_f32 v53, v53\nv_mul_f32 v52, v52, v45")
            for w in range(8): A(f"v_readlane_b32 s{20+w}, v52, {w}")
            A("v_add_f32 v53, v53, v54")
            A("s_waitcnt lgkmcnt(0)")
            if L == 0: A("v_readfirstlane_b32 s9, v4")
            A("v_mul_f32 v24, s20, v8\nv_mul_f32 v25, s20, v9")
            for w in range(1, 8):
                A(f"v_fmac_f32 v24, s{20+w}, v{8+2*w}\nv_fmac_f32 v25, s{20+w}, v{9+2*w}")
            A("v_cvt_pk_bf16_f32 v24, v24, v25")
            hstore("buffer_store_dword v24, v44, s[16:19], s69 offen")
            A("s_mov_b64 exec, 1")
            hstore("buffer_store_dword v53, off, s[16:19], s70")
            fullexec()
            stamp(4 + 2 * L, "O stored")
        if L == 0:
            A("s_waitcnt lgkmcnt(0)\nv_readfirstlane_b32 s9, v4")

    def wo_stage(L):
        def body(base):
            A("s_lshr_b32 s68, s3, 1\ns_and_b32 s69, s3, 1")
            A(f"s_lshl_b32 s70, s68, 12\ns_lshl_b32 s69, s69, 7\ns_add_u32 s70, s70, s69\ns_add_u32 s70, s70, s14\ns_add_u32 s70, s70, {O_OFF[L]}")
            A(f"s_lshl_b32 s71, s68, 6\ns_add_u32 s71, s71, s14\ns_add_u32 s71, s71, {LSE_OFF[L]}")
            A("v_lshlrev_b32 v44, 8, v1\nv_lshl_add_u32 v44, v2, 4, v44\nv_lshlrev_b32 v45, 4, v2")
            A(f"v_lshlrev_b32 v46, 3, v0\ns_lshl_b32 s15, s3, 9\nv_add_u32 v46, s15, v46")
            poll(["buffer_load_dwordx4 v[8:11], v44, s[16:19], s70 offen sc1",
                  "buffer_load_dwordx4 v[12:15], v44, s[16:19], s70 offen offset:64 sc1",
                  "buffer_load_dwordx4 v[16:19], v45, s[16:19], s71 offen sc1"], range(8, 20), 47)
            if trace:
                with wlt(6): stamp(8 + L, "wo poll done")
            for s in range(2):
                for f in range(2):
                    d = 24 + 4 * f
                    A(f"v_mfma_f32_16x16x32_bf16 v[{d}:{d+3}], v[{8+4*s}:{11+4*s}], v[{base+8*s+4*f}:{base+8*s+4*f+3}], " + ("0" if s == 0 else f"v[{d}:{d+3}]"))
            A("v_max3_f32 v20, v16, v17, v18\nv_max_f32 v20, v20, v19")
            for r in range(4): A(f"v_sub_f32 v{16+r}, v{16+r}, v20")
            for r in range(4): A(f"v_exp_f32 v{16+r}, v{16+r}")
            A("v_add_f32 v20, v16, v17\nv_add_f32 v21, v18, v19\nv_add_f32 v20, v20, v21\nv_rcp_f32 v20, v20")
            A("v_mul_f32 v22, v16, v24\nv_mul_f32 v23, v16, v28")
            for r in range(1, 4):
                A(f"v_fmac_f32 v22, v{16+r}, v{24+r}\nv_fmac_f32 v23, v{16+r}, v{28+r}")
            A("v_mul_f32 v22, v22, v20\nv_mul_f32 v23, v23, v20")
            A(f"ds_write_b64 v46, v[22:23] offset:{L_WO}")
        with isWO():
            with Cond("wo_hi", "s_cmp_ge_u32 s5, 16"): body(S0)
            with Cond("wo_lo", "s_cmp_lt_u32 s5, 16"): body(S1)
            A("v_lshlrev_b32 v46, 4, v0")
            A(f"s_lshl_b32 s68, s10, 12\ns_lshl_b32 s69, s4, 9\ns_add_u32 s68, s68, s69\ns_add_u32 s68, s68, {AREA_A + SLOT_PO[L]*SLOT_SZ}")
            A("s_waitcnt lgkmcnt(0)\ns_barrier")
            with weq(0):
                setexec(0xffffffff, 0)
                for w in range(8):
                    A(f"ds_read_b128 v[{8+4*w}:{11+4*w}], v46 offset:{L_WO+512*w}")
                for w in range(1, 8):
                    A(f"s_waitcnt lgkmcnt({7-w})")
                    A(f"v_pk_add_f32 v[8:9], v[8:9], v[{8+4*w}:{9+4*w}]\nv_pk_add_f32 v[10:11], v[10:11], v[{10+4*w}:{11+4*w}]")
                A("buffer_store_dwordx4 v[8:11], v46, s[16:19], s68 offen sc1")
                fullexec()
                stamp(5 + 2 * L, "PO stored")

    def r_stage(L, kind):
        final = (L == 1 and kind == 1)
        slot = (SLOT_PO if kind == 0 else SLOT_P2)[L]
        def body():
            A(f"s_lshl_b32 s68, s13, 12\ns_add_u32 s68, s68, {AREA_A + slot*SLOT_SZ}")
            A("v_lshlrev_b32 v44, 4, v0")
            if not final:
                xo = X1_OFF[L] if kind == 0 else X2_OFF
                so = XS1_OFF[L] if kind == 0 else XS2_OFF
                A(f"s_add_u32 s69, s14, {xo}\ns_lshl_b32 s70, s13, 3\ns_add_u32 s70, s70, s14\ns_add_u32 s70, s70, {so}")
                A("v_lshlrev_b32 v45, 5, v0")
            else:
                A("s_mov_b32 s28, s52\ns_mov_b32 s29, s53\ns_mov_b32 s30, 4608\ns_mov_b32 s31, 0x20000")
            A(f"v_lshlrev_b32 v30, 16, v{S2}\nv_and_b32 v31, 0xffff0000, v{S2}")
            if kind == 1:
                A(f"v_lshlrev_b32 v32, 16, v{S2+1}\nv_and_b32 v33, 0xffff0000, v{S2+1}")
            poll([f"buffer_load_dwordx4 v[{8+4*u}:{11+4*u}], v44, s[16:19], s68 offen offset:{1024*u} sc1" for u in range(4)], range(8, 24), 47)
            stamp(8 + 2 * L + kind, "R poll done")
            A("v_pk_add_f32 v[8:9], v[8:9], v[12:13]\nv_pk_add_f32 v[10:11], v[10:11], v[14:15]")
            A("v_pk_add_f32 v[16:17], v[16:17], v[20:21]\nv_pk_add_f32 v[18:19], v[18:19], v[22:23]")
            A("v_pk_add_f32 v[8:9], v[8:9], v[16:17]\nv_pk_add_f32 v[10:11], v[10:11], v[18:19]")
            if kind == 0:
                A("v_permlane32_swap_b32 v8, v10\nv_permlane32_swap_b32 v9, v11")
                A("v_add_f32 v8, v8, v10\nv_add_f32 v9, v9, v11")
            else:
                A("v_permlane32_swap_b32 v8, v9\nv_permlane32_swap_b32 v10, v11")
                A("v_add_f32 v8, v8, v9\nv_add_f32 v9, v10, v11")
            A("v_cvt_pk_bf16_f32 v8, v8, v9")
            A("v_and_b32 v9, 0xffff0000, v8\nv_lshlrev_b32 v8, 16, v8")
            if kind == 1:
                A("v_add_f32 v8, v8, v32\nv_add_f32 v9, v9, v33\nv_cvt_pk_bf16_f32 v8, v8, v9")
                A("v_and_b32 v9, 0xffff0000, v8\nv_lshlrev_b32 v8, 16, v8")
            A(f"v_add_f32 v8, v8, v30\nv_add_f32 v9, v9, v31\nv_cvt_pk_bf16_f32 v{S2}, v8, v9")
            if final:
                A(f"buffer_store_dword v{S2}, v{S2+2}, s[28:31], 0 offen")
                with Cond("e", "s_cmp_eq_u32 s13, 0"):
                    A("v_mov_b32 v8, s7\ns_mov_b64 exec, 1")
                    A("buffer_store_dword v8, off, s[16:19], 0 sc1")
                    fullexec()
            else:
                hstore(f"buffer_store_dword v{S2}, v{S2+2}, s[16:19], s69 offen")
                A(f"v_lshlrev_b32 v8, 16, v{S2}\nv_and_b32 v9, 0xffff0000, v{S2}")
                A("v_add_f32 v10, v8, v9\nv_mul_f32 v11, v8, v8\nv_fmac_f32 v11, v9, v9")
                for mod in ("quad_perm:[1,0,3,2]", "quad_perm:[2,3,0,1]", "row_half_mirror"):
                    A(f"v_add_f32_dpp v10, v10, v10 {mod} row_mask:0xf bank_mask:0xf")
                    A(f"v_add_f32_dpp v11, v11, v11 {mod} row_mask:0xf bank_mask:0xf")
                A("v_mov_b32 v12, v10\nv_mov_b32 v13, v11")
                A("v_permlane32_swap_b32 v12, v10\nv_permlane32_swap_b32 v13, v11")
                A("v_add_f32 v10, v10, v12\nv_add_f32 v11, v11, v13")
                setexec(0x01010101, 0)
                hstore("buffer_store_dwordx2 v[10:11], v45, s[16:19], s70 offen")
                fullexec()
            stamp(4 + 2 * L + kind, "R done")
        with isR():
            with weq(7):
                if final:
                    A("s_and_b32 s68, s13, 7")
                    with Cond("fin", "s_cmp_eq_u32 s68, s4"): body()
                else:
                    body()

    def t32_stage(role, L):
        cond, base, js = {"w1": (isW1, S1, "s11"), "w2": (isW2, S2, "s12"), "wq": (isWQ, S0, "s5")}[role]
        src = {"w1": X1_OFF[L], "w2": H_OFF[L], "wq": X2_OFF}[role]
        with cond():
            with wlt(6):
                ones_preset()
                t32_addr()
                A(f"v_mul_u32_u24 v44, 1152, v1\nv_lshl_add_u32 v44, v2, 4, v44\ns_mul_i32 s15, s3, 192\ns_add_u32 s15, s15, s14\ns_add_u32 s15, s15, {src}")
                setexec(0x000f000f, 0x000f000f)
                poll([f"buffer_load_dwordx4 v[{8+4*s}:{11+4*s}], v44, s[16:19], s15 offen offset:{64*s} sc1" for s in range(3)], range(8, 20), 47)
                fullexec()
                if L == 0: stamp({"w1": 10, "w2": 11, "wq": 12}[role], "t32 poll done")
                t32_mma(base)
                A("s_barrier")
            with weq(7):
                A("s_barrier")
            with weq(6):
                if role == "w2":
                    A(f"v_lshlrev_b32 v46, 3, v0\nv_add_u32 v46, {L_T}, v46\nv_lshlrev_b32 v44, 4, v0")
                    A(f"s_lshl_b32 s68, s12, 12\ns_lshl_b32 s69, s4, 9\ns_add_u32 s68, s68, s69\ns_add_u32 s68, s68, {AREA_A + SLOT_P2[L]*SLOT_SZ}")
                    setexec(0xffffffff, 0)
                    A("s_barrier")
                    for w in range(6):
                        A(f"ds_read2st64_b64 v[{8+4*w}:{11+4*w}], v46 offset0:{2*w} offset1:{2*w+1}")
                    for w in range(1, 6):
                        A(f"s_waitcnt lgkmcnt({5-w})")
                        A(f"v_pk_add_f32 v[8:9], v[8:9], v[{8+4*w}:{9+4*w}]\nv_pk_add_f32 v[10:11], v[10:11], v[{10+4*w}:{11+4*w}]")
                    A("buffer_store_dwordx4 v[8:11], v44, s[16:19], s68 offen sc1")
                    fullexec()
                else:
                    so = XS1_OFF[L] if role == "w1" else XS2_OFF
                    A(f"v_lshlrev_b32 v44, 8, v2\nv_lshl_add_u32 v44, v1, 4, v44\ns_add_u32 s68, s14, {so}")
                    for k in range(8, 12): A(f"v_mov_b32 v{k}, 0")
                    if role == "w1":
                        A(f"v_mul_u32_u24 v45, 1152, v2\nv_lshl_add_u32 v45, v1, 2, v45\ns_lshl_b32 s69, s11, 6\ns_add_u32 s69, s69, s14\ns_add_u32 s69, s69, {H_OFF[L]}")
                        A(f"v_lshlrev_b32 v50, 16, v{S2}\nv_and_b32 v51, 0xffff0000, v{S2}")
                        A(f"s_mov_b32 s70, {f2u(-2*LOG2E*math.sqrt(2/math.pi)*0.044715):#x}\ns_mov_b32 s71, {f2u(-2*LOG2E*math.sqrt(2/math.pi)):#x}")
                    else:
                        A(f"v_lshlrev_b32 v45, 10, v2\nv_lshl_add_u32 v45, v1, 2, v45\ns_lshl_b32 s69, s5, 6\ns_add_u32 s69, s69, s14\ns_add_u32 s69, s69, {Q1_OFF}")
                    setexec(0x01ff01ff, 0x01ff01ff)
                    poll(["buffer_load_dwordx4 v[8:11], v44, s[16:19], s68 offen sc1"], range(8, 12), 47)
                    fullexec()
                    A("v_add_f32 v48, v8, v10\nv_add_f32 v49, v9, v11")
                    row_reduce2(48, 49)
                    stats_finish()
                    if role == "wq": A(f"v_mul_f32 v49, {f2u(QSCALE):#x}, v49")
                    t32_final_read()
                    if role == "wq":
                        A("v_mul_f32 v8, v49, v8\nv_mul_f32 v9, v49, v9\nv_cvt_pk_bf16_f32 v8, v8, v9")
                    else:
                        A("v_fma_f32 v8, v49, v8, v50\nv_fma_f32 v9, v49, v9, v51")
                        A("v_mul_f32 v10, v8, v8\nv_mul_f32 v11, v9, v9")
                        A("v_mov_b32 v12, s71\nv_mov_b32 v13, s71\nv_fmac_f32 v12, s70, v10\nv_fmac_f32 v13, s70, v11")
                        A("v_mul_f32 v12, v12, v8\nv_mul_f32 v13, v13, v9")
                        A("v_exp_f32 v12, v12\nv_exp_f32 v13, v13")
                        A("v_add_f32 v12, 1.0, v12\nv_add_f32 v13, 1.0, v13")
                        A("v_rcp_f32 v12, v12\nv_rcp_f32 v13, v13")
                        A("v_mul_f32 v8, v8, v12\nv_mul_f32 v9, v9, v13\nv_cvt_pk_bf16_f32 v8, v8, v9")
                    hstore("buffer_store_dword v8, v45, s[16:19], s69 offen")
                stamp({"w1": 5, "w2": 6, "wq": 7}[role] + 3 * L, "t32 stored")

    def q1_fetch():
        with weq(0):
            A(f"s_lshl_b32 s68, s64, 10\ns_lshl_b32 s69, s65, 9\ns_add_u32 s68, s68, s69\ns_add_u32 s68, s68, s14\ns_add_u32 s68, s68, {Q1_OFF}")
            A("v_lshlrev_b32 v44, 4, v0")
            setexec(0xffffffff, 0)
            poll(["buffer_load_dwordx4 v[8:11], v44, s[16:19], s68 offen sc1"], range(8, 12), 47)
            A(f"ds_write_b128 v44, v[8:11] offset:{L_Q}")
            fullexec()
            A("s_waitcnt lgkmcnt(0)")

    stages = [lambda: att(0), lambda: wo_stage(0), lambda: r_stage(0, 0), lambda: t32_stage("w1", 0), lambda: t32_stage("w2", 0),
              lambda: r_stage(0, 1), lambda: t32_stage("wq", 0), q1_fetch,
              lambda: att(1), lambda: wo_stage(1), lambda: r_stage(1, 0), lambda: t32_stage("w1", 1), lambda: t32_stage("w2", 1), lambda: r_stage(1, 1)]
    names = ["att0", "wo0", "r00", "w10", "w20", "r01", "wq", "q1", "att1", "wo1", "r10", "w11", "w21", "r11"]
    for k, st in enumerate(stages):
        if k >= stop: break
        A.c(f"======== stage {names[k]} ========")
        st()
    if trace:
        A("s_waitcnt lgkmcnt(0)\nv_mov_b32 v8, 0")
        for k in range(14):
            A(f"v_writelane_b32 v8, s{74+2*k}, {k}")
        A(f"s_lshl_b32 s68, s2, 3\ns_add_u32 s68, s68, s3\ns_lshl_b32 s68, s68, 6\ns_add_u32 s68, s68, {TRACE}\nv_lshlrev_b32 v9, 2, v0")
        A("s_mov_b64 exec, 0xffff\nbuffer_store_dword v8, v9, s[16:19], s68 offen")
    A.label("L_end")
    A("s_endpgm")
    A.raw(f""".section .rodata,"a"
.p2align 6
.amdhsa_kernel {NAME}_kernel
  .amdhsa_next_free_vgpr 256
  .amdhsa_next_free_sgpr 102
  .amdhsa_accum_offset 256
  .amdhsa_group_segment_fixed_size 0
  .amdhsa_kernarg_size 104
  .amdhsa_user_sgpr_count 2
  .amdhsa_user_sgpr_kernarg_segment_ptr 1
  .amdhsa_system_sgpr_workgroup_id_x 1
.end_amdhsa_kernel""")
    return A

if __name__ == "__main__":
    import json
    P = json.loads(sys.argv[2]) if len(sys.argv) > 2 else {}
    A = gen(P)
    open(sys.argv[1], "w").write(A.text())
    print("instrs", len(A.ins), "nop states", A.nnops)
```

```python
import sys, math, struct
sys.path.insert(0, "gen")
from asmlib import Asm

NAME = "interleave_layers__sliding_block_cached__dense_activation_gelu__decode"
VER = 2
FLAGS = 0x1000; QA = [0x10000, 0x50000]; AREA_A = 0x90000; SLOT_SZ = 18 * 8192; AREA_B = 0x120000; TRACE = 0x1A0000; WS_SIZE = 0x1C0000
O_OFF = [0, 16384]; X1_OFF = [36864, 46080]; X2_OFF = 41472; H_OFF = [50688, 55296]
LSE_OFF = [59904, 60160]; XS1_OFF = [60416, 62464]; XS2_OFF = 61440
SLOT_PO = [0, 1]; SLOT_P2 = [2, 3]
L_Q = 0; L_ST = 512; L_MODE = 640; L_O = 1024; L_T = 9216; L_CS = 17408; LDS_SIZE = 23552
WQF = 56; SL = 72
KR, VR = 128, 192
def f2u(f): return struct.unpack("<I", struct.pack("<f", f))[0]
LOG2E = 1.4426950408889634
QSCALE = (128 ** -0.5) * LOG2E

def gen(P):
    A = Asm()
    trace = P.get("trace", 0)
    stop = P.get("stop", 99)
    kearly = P.get("kearly", 2); qpos = P.get("qpos", 2); wpos = P.get("wpos", 0); w2pos = P.get("w2pos", 1)
    WNT = " nt" if P.get("wnt", 1) else ""
    def stamp(k, name=""):
        if trace:
            A(f"s_memrealtime s[{74+2*k}:{75+2*k}]")
            A.c(f"stamp {k} {name}")
    class Cond:
        def __init__(s, name, test): s.name = name; s.test = test
        def __enter__(s):
            s.l = A.L("Lskip")
            A(s.test); A(f"s_cbranch_scc0 {s.l}"); A.push_cond(s.name)
        def __exit__(s, *a):
            A.pop_cond(); A.label(s.l)
    isWO = lambda: Cond("wo", "s_cmp_lt_u32 s5, 18")
    isW1 = lambda: Cond("w1", "s_cmp_lt_u32 s12, 9")
    isR = lambda: Cond("r", "s_cmp_lt_u32 s13, 18")
    cls = lambda k: Cond({0: "c0", 1: "wo", 2: "w1c"}[k], f"s_cmp_eq_u32 s72, {k}")
    wlt = lambda n: Cond(f"w<{n}", f"s_cmp_lt_u32 s3, {n}")
    weq = lambda n: Cond(f"w={n}", f"s_cmp_eq_u32 s3, {n}")
    wne = lambda n: Cond(f"w!{n}", f"s_cmp_lg_u32 s3, {n}")
    def setexec(lo, hi):
        A(f"s_mov_b32 exec_lo, {lo:#x}\ns_mov_b32 exec_hi, {hi:#x}")
    def fullexec(): A("s_mov_b64 exec, -1")
    def hstore(text):
        l1 = A.L("Lsl"); l2 = A.L("Lsd")
        A(f"s_cmp_lg_u32 s9, 0\ns_cbranch_scc1 {l1}")
        A(text)
        A(f"s_branch {l2}")
        A.label(l1)
        A.push_cond("never"); A(text + " sc1"); A.pop_cond()
        A.label(l2)
    def chk_sent(regs, tmp):
        rs = list(regs); first = True
        while rs:
            if first:
                if len(rs) >= 3: A(f"v_max3_u32 v{tmp}, v{rs[0]}, v{rs[1]}, v{rs[2]}"); rs = rs[3:]
                else: A(f"v_max_u32 v{tmp}, v{rs[0]}, v{rs[1]}"); rs = rs[2:]
                first = False
            elif len(rs) >= 2: A(f"v_max3_u32 v{tmp}, v{tmp}, v{rs[0]}, v{rs[1]}"); rs = rs[2:]
            else: A(f"v_max_u32 v{tmp}, v{tmp}, v{rs[0]}"); rs = rs[1:]
        A(f"v_cmp_eq_u32 vcc, -1, v{tmp}")
    def chk_tag(regs, tmp):
        rs = list(regs)
        for r in rs: A(f"v_xor_b32 v{r}, s6, v{r}")
        A(f"v_or3_b32 v{tmp}, v{rs[0]}, v{rs[1]}, v{rs[2]}"); rs = rs[3:]
        while rs:
            if len(rs) >= 2: A(f"v_or3_b32 v{tmp}, v{tmp}, v{rs[0]}, v{rs[1]}"); rs = rs[2:]
            else: A(f"v_or_b32 v{tmp}, v{tmp}, v{rs[0]}"); rs = rs[1:]
        A(f"v_and_b32 v{tmp}, 0xff, v{tmp}\nv_cmp_ne_u32 vcc, 0, v{tmp}")
    def poll(loads, regs, tmp, tagged=False):
        lp = A.L("Lpoll"); ld = A.L("Lpd")
        A.label(lp)
        for t in loads: A(t)
        A("s_waitcnt vmcnt(0)")
        (chk_tag if tagged else chk_sent)(regs, tmp)
        A(f"s_cbranch_vccz {ld}")
        A(f"s_sub_u32 s8, s8, 1\ns_cbranch_scc0 {lp}\ns_mov_b32 s8, 0")
        A.label(ld)

    hdr = open(f"cdna_kernels/{NAME}.s.ref").read().split("\n")
    for ln in hdr:
        if ln.startswith("; @launch"): break
        A.raw(ln)
    A.raw(f"; @launch grid=(256,1,1) block=(512,1,1) lds={LDS_SIZE}")
    A.raw('.amdgcn_target "amdgcn-amd-amdhsa--gfx950"')
    A.raw(f".text\n.globl {NAME}_kernel\n.p2align 8\n.type {NAME}_kernel,@function\n{NAME}_kernel:")
    A("s_cmp_ge_u32 s2, 256\ns_cbranch_scc1 L_end")
    A("s_load_dwordx2 s[56:57], s[0:1], 96\ns_load_dwordx16 s[32:47], s[0:1], 0\ns_load_dwordx8 s[48:55], s[0:1], 64")
    if trace:
        for k in range(1, 14): A(f"s_mov_b32 s{74+2*k}, 0")
    stamp(0, "start")
    A("v_lshrrev_b32 v1, 6, v0\nv_and_b32 v0, 63, v0\nv_readfirstlane_b32 s3, v1")
    A("v_and_b32 v1, 15, v0\nv_lshrrev_b32 v2, 4, v0")
    A("s_and_b32 s4, s2, 7\ns_lshr_b32 s5, s2, 3")
    A("s_mov_b32 s8, 150000\ns_mov_b32 s9, 1")
    A("s_cmp_ge_u32 s5, 9\ns_cselect_b32 s11, 1, 0\ns_mul_i32 s10, s11, 9\ns_sub_u32 s10, s5, s10")
    A("s_sub_u32 s12, s5, 18")
    A("s_mov_b32 s13, 99\ns_cmp_eq_u32 s3, 7\ns_cselect_b32 s13, s12, s13")
    A("s_sub_u32 s15, s5, 13\ns_cmp_ge_u32 s5, 27\ns_cselect_b32 s15, s15, 99\ns_cmp_eq_u32 s3, 5\ns_cselect_b32 s13, s15, s13")
    A("s_cmp_lt_u32 s3, 6\ns_cselect_b32 s72, 2, 0\ns_cmp_lt_u32 s12, 9\ns_cselect_b32 s72, s72, 0\ns_cmp_lt_u32 s5, 18\ns_cselect_b32 s72, 1, s72")
    A(f"s_lshl_b32 s14, s4, 16\ns_add_u32 s14, s14, {AREA_B}")
    A("s_mov_b32 s58, 0x05040100\ns_mov_b32 s59, 0x07060302")
    A("s_bfe_u32 s64, s5, 0x20001\ns_and_b32 s65, s5, 1\ns_lshr_b32 s66, s5, 3")
    A("s_getreg_b32 s67, hwreg(HW_REG_XCC_ID)\ns_and_b32 s67, s67, 15")
    A("v_and_b32 v4, 1, v0\nv_lshlrev_b32 v4, 4, v4\nv_mov_b32 v3, 0xffff\nv_lshlrev_b32 v3, v4, v3")
    A("s_and_b32 s73, s5, 7\ns_lshl_b32 s60, s3, 12")
    for t in range(1, 4):
        A(f"s_add_u32 s{60+t}, s60, {t << 15}")
    A("v_and_b32 v50, 3, v1\nv_lshlrev_b32 v50, 10, v50\nv_lshrrev_b32 v51, 2, v1\nv_lshl_add_u32 v50, v51, 8, v50\nv_lshl_add_u32 v50, v2, 4, v50\nv_lshlrev_b32 v51, 4, v0")
    def tile_addr(r=45): A(f"s_lshl_b32 s15, s3, 10\nv_lshl_add_u32 v{r}, v0, 4, s15")
    def xfrag_off(r=46): A(f"v_lshrrev_b32 v{r}, 2, v1\nv_mul_u32_u24 v{r}, 1152, v{r}\nv_lshl_add_u32 v{r}, v2, 4, v{r}")
    for k in [6, 44, 47, SL + 2] + list(range(8, 12)) + list(range(24, 40)): A(f"v_mov_b32 v{k}, 0")
    for k in range(12, 16): A(f"v_mov_b32 v{k}, 0x3f803f80")
    tile_addr(); xfrag_off()
    A("s_waitcnt lgkmcnt(0)")
    A(f"s_mov_b32 s16, s56\ns_mov_b32 s17, s57\ns_mov_b32 s18, {WS_SIZE}\ns_mov_b32 s19, 0x20000")

    def srd_tmp(ptr, offs, total):
        A(f"s_add_u32 s28, s{ptr}, {offs}\ns_addc_u32 s29, s{ptr+1}, 0\ns_sub_u32 s30, {total}, {offs}\ns_mov_b32 s31, 0x20000")
    def srd_x0(): A("s_mov_b32 s28, s32\ns_mov_b32 s29, s33\ns_mov_b32 s30, 4608\ns_mov_b32 s31, 0x20000")
    def w_step(land, stride, row0, tag, va=44):
        for ii in range(8):
            ro = (row0 + ii) * stride
            if stride * 3 < 4096:
                if ii % 4 == 0: A(f"s_mov_b32 s15, {ro}")
                A(f"buffer_load_dwordx2 v[{land+2*ii}:{land+2*ii+1}], v{va}, s[28:31], s15 offen offset:{(ii % 4) * stride}{WNT}", tag=tag)
            else:
                A(f"s_mov_b32 s15, {ro}")
                A(f"buffer_load_dwordx2 v[{land+2*ii}:{land+2*ii+1}], v{va}, s[28:31], s15 offen{WNT}", tag=tag)
    def w_lane(stride, rows_per_wave, va=44):
        A(f"v_mul_u32_u24 v{va}, {8*stride}, v2\nv_lshl_add_u32 v{va}, v1, 3, v{va}\ns_mul_i32 s15, s3, {rows_per_wave*stride}\nv_add_u32 v{va}, s15, v{va}")
    def w_perm(F, T):
        for d in range(2):
            for q in range(4):
                a = T + 4 * q + d; b = a + 2
                A(f"v_perm_b32 v{F+8*d+q}, v{b}, v{a}, s58\nv_perm_b32 v{F+8*d+4+q}, v{b}, v{a}, s59")
    def mma4(D, a, F, first):
        for c in range(4):
            d = D + 4 * c
            A(f"v_mfma_f32_16x16x32_bf16 v[{d}:{d+3}], v[{a}:{a+3}], v[{F+4*c}:{F+4*c+3}], " + ("0" if first else f"v[{d}:{d+3}]"))
    def tile_wr(D, va):
        A(f"ds_write2_b32 v{va}, v{D}, v{D+4} offset0:0 offset1:1\nds_write2_b32 v{va}, v{D+8}, v{D+12} offset0:2 offset1:3")
    def tile_sum(n, base, va, dst=8):
        for w in range(n):
            A(f"ds_read_b128 v[{dst+4*w}:{dst+4*w+3}], v{va} offset:{base+1024*w}")
        return n
    def tile_add(n, dst=8, after=0):
        for w in range(1, n):
            A(f"s_waitcnt lgkmcnt({n-1-w+after})")
            A(f"v_pk_add_f32 v[{dst}:{dst+1}], v[{dst}:{dst+1}], v[{dst+4*w}:{dst+4*w+1}]\nv_pk_add_f32 v[{dst+2}:{dst+3}], v[{dst+2}:{dst+3}], v[{dst+4*w+2}:{dst+4*w+3}]")
    def row_reduce2(a, b):
        for n in (8, 4, 2, 1):
            A(f"v_add_f32_dpp v{a}, v{a}, v{a} row_ror:{n} row_mask:0xf bank_mask:0xf")
            A(f"v_add_f32_dpp v{b}, v{b}, v{b} row_ror:{n} row_mask:0xf bank_mask:0xf")
    def stats_finish():
        A(f"v_mul_f32 v48, {f2u(-1/576):#x}, v48\nv_mul_f32 v49, {f2u(1/576):#x}, v49")
        A("v_fma_f32 v49, -v48, v48, v49")
        A(f"v_add_f32 v49, {f2u(1e-5):#x}, v49\nv_rsq_f32 v49, v49")
    def ln_fix(cs):
        A(f"v_pk_fma_f32 v[8:9], v[{cs}:{cs+1}], v[48:49], v[8:9] op_sel_hi:[1,0,1]\nv_pk_fma_f32 v[10:11], v[{cs+2}:{cs+3}], v[48:49], v[10:11] op_sel_hi:[1,0,1]")
    def wait_cls(tag):
        if wpos == 0:
            for c in range(3):
                with cls(c): A.wait_vm(tag)
        else: A.wait_vm(tag)
    def k_loads(ts):
        for t in ts:
            for s in range(4):
                A(f"buffer_load_dwordx4 v[{KR+16*t+4*s}:{KR+16*t+4*s+3}], v50, s[20:23], s{60+t} offen offset:{64*s} nt", tag=f"K{t}")
    def v_loads(ts):
        for t in ts:
            for r in range(4):
                A(f"buffer_load_dwordx4 v[{VR+16*t+4*r}:{VR+16*t+4*r+3}], v51, s[24:27], s{60+t} offen offset:{1024*r} nt", tag=f"V{t}{r}")

    with wlt(5):
        A(f"s_mul_i32 s68, s66, {144*8192}\ns_lshl_b32 s69, s4, 10\ns_add_u32 s68, s68, s69\ns_lshl_b32 s69, s73, 7\ns_add_u32 s68, s68, s69")
        srd_tmp(38, "s68", 4718592)
        w_lane(8192, 32)
        A("s_cmp_eq_u32 s3, 4\ns_cselect_b32 exec_hi, 0, -1")
        w_step(24, 8192, 0, "wq")
        srd_x0()
        A("s_mul_i32 s15, s66, 288\ns_lshl_b32 s68, s3, 6\ns_add_u32 s15, s15, s68")
        A("buffer_load_dwordx4 v[8:11], v46, s[28:31], s15 offen", tag="x0f")
        fullexec()
    A("buffer_load_dword v55, off, s[16:19], 0 sc1", tag="E")
    with weq(6):
        srd_x0()
        A("v_mul_u32_u24 v44, 1152, v2\nv_lshl_add_u32 v44, v1, 4, v44")
        for u in range(4):
            A(f"buffer_load_dwordx4 v[{8+4*u}:{11+4*u}], v44, s[28:31], 0 offen offset:{256*u}", tag="x0s")
        setexec(0x00ff00ff, 0x00ff00ff)
        A("buffer_load_dwordx4 v[24:27], v44, s[28:31], 0 offen offset:1024", tag="x0s")
        fullexec()
    with weq(7):
        A("v_mov_b32 v4, -1\nv_mov_b32 v5, -1\nv_mov_b32 v6, -1\nv_mov_b32 v7, -1")
        A("s_lshl_b32 s68, s5, 11\ns_add_u32 s68, s68, s14")
        A("buffer_store_dwordx4 v[4:7], v51, s[16:19], s68 offen sc1", tag="rst")
        A("buffer_store_dwordx4 v[4:7], v51, s[16:19], s68 offen offset:1024 sc1", tag="rst")
    A("s_lshl_b32 s68, s64, 25\ns_lshl_b32 s69, s4, 22\ns_add_u32 s68, s68, s69\ns_lshl_b32 s69, s65, 21\ns_add_u32 s68, s68, s69")
    A(f"s_lshl_b32 s69, s66, 17\ns_add_u32 s68, s68, s69\ns_add_u32 s68, s68, {6144*256}")
    A("s_add_u32 s20, s34, s68\ns_addc_u32 s21, s35, 0\ns_mov_b32 s22, 0x20000\ns_mov_b32 s23, 0x20000")
    A("s_add_u32 s24, s36, s68\ns_addc_u32 s25, s37, 0\ns_mov_b32 s26, 0x20000\ns_mov_b32 s27, 0x20000")
    if P.get("bar0", 1): A("s_barrier")
    k_loads(range(kearly))
    vearly = P.get("vearly", 0)
    v_loads(range(vearly))
    if vearly: stamp(6, "early issued")
    def getT():
        A.wait_vm("E")
        A("v_readfirstlane_b32 s7, v55")
        A("s_nop 0\ns_add_u32 s7, s7, 1\ns_and_b32 s6, s7, 0xff\nv_mov_b32 v55, 0xffffff00")
    with wlt(5):
        A.wait_vm("x0f")
        stamp(5, "wq arrived")
        w_perm(WQF, 24)
        mma4(24, 8, WQF, True)
        mma4(SL, 12, WQF, True)
        A(f"v_add_u32 v47, {L_CS}, v45\nv_add_u32 v45, {L_T}, v45")
        tile_wr(24, 45); tile_wr(SL, 47)
        A("s_waitcnt lgkmcnt(0)")
    with weq(6):
        A.wait_vm("x0s")
        A("v_mov_b32 v28, 0x3f803f80\nv_mov_b32 v48, 0\nv_mov_b32 v49, 0")
        for k in range(8, 28):
            A(f"v_dot2_f32_bf16 v48, v{k}, v28, v48")
        for k in range(8, 28):
            A(f"v_dot2_f32_bf16 v49, v{k}, v{k}, v49")
        row_reduce2(48, 49)
        stats_finish()
        A(f"v_mul_f32 v49, {f2u(QSCALE):#x}, v49")
    getT()
    def q_addr(L):
        A(f"v_lshlrev_b32 v44, 11, v2\nv_lshl_add_u32 v44, v1, 4, v44")
        A(f"s_lshl_b32 s70, s4, 15\ns_lshl_b32 s71, s66, 13\ns_add_u32 s70, s70, s71\ns_lshl_b32 s71, s73, 8\ns_add_u32 s70, s70, s71\ns_add_u32 s70, s70, {QA[L]}")
    def q_out():
        A("v_pk_mul_f32 v[8:9], v[8:9], v[48:49] op_sel:[0,1] op_sel_hi:[1,1]\nv_pk_mul_f32 v[10:11], v[10:11], v[48:49] op_sel:[0,1] op_sel_hi:[1,1]")
        A("v_and_or_b32 v8, v8, v55, s6")
    with weq(7):
        A("v_mov_b32 v4, s7\nv_mov_b32 v5, s67")
        A(f"s_lshl_b32 s68, s4, 5\ns_add_u32 s68, s68, s5\ns_lshl_b32 s68, s68, 7\ns_add_u32 s68, s68, {FLAGS}")
        A("s_barrier")
        A.wait_vm("rst")
        A("s_mov_b64 exec, 1")
        A("buffer_store_dwordx2 v[4:5], off, s[16:19], s68 sc1")
        fullexec()
    with wne(7):
        with weq(6):
            q_addr(0)
        A("s_barrier")
        with weq(6):
            tile_sum(5, L_T, 51, 8); tile_sum(5, L_CS, 51, 56)
            tile_add(5, 8, after=5); tile_add(5, 56)
            ln_fix(56)
            q_out()
            A("buffer_store_dwordx4 v[8:11], v44, s[16:19], s70 offen sc1")
            stamp(4, "q0 stored")
    A("s_barrier")
    k_loads(range(kearly, 4))
    with isW1():
        with weq(6):
            A("s_mul_i32 s68, s4, 1152\ns_lshl_b32 s69, s12, 7\ns_add_u32 s68, s68, s69")
            srd_tmp(46, "s68", 9216)
            A("v_lshlrev_b32 v44, 3, v1")
            A(f"buffer_load_dwordx2 v[88:89], v44, s[28:31], 0 offen", tag="b1")
    with isR():
        A("v_and_b32 v44, 7, v0\nv_lshlrev_b32 v44, 3, v44\nv_lshrrev_b32 v45, 5, v0\nv_lshl_add_u32 v44, v45, 2, v44")
        A("s_lshl_b32 s68, s13, 6")
        srd_tmp(50, "s68", 1152)
        A(f"buffer_load_dword v{SL+1}, v44, s[28:31], 0 offen", tag="b2")
        A(f"v_bfe_u32 v45, v0, 3, 2\nv_mul_u32_u24 v45, 1152, v45\nv_add3_u32 v{SL+2}, v44, v45, s68")
        srd_x0()
        A(f"buffer_load_dword v{SL}, v{SL+2}, s[28:31], 0 offen", tag="xres")
    v_loads(range(vearly, qpos))
    def q_loads(L):
        return [f"buffer_load_dwordx4 v[{8+4*k}:{11+4*k}], v{47}, s[16:19], s{68+k} offen sc1" for k in range(4)]
    def q_laddr(L):
        A(f"s_lshl_b32 s68, s4, 15\ns_lshl_b32 s69, s64, 11\ns_add_u32 s68, s68, s69\ns_lshl_b32 s69, s65, 10\ns_add_u32 s68, s68, s69\ns_add_u32 s68, s68, {QA[L]}")
        A("s_add_u32 s69, s68, 8192\ns_add_u32 s70, s68, 16384\ns_add_u32 s71, s68, 24576\nv_lshlrev_b32 v47, 4, v0")
    def q_finish():
        A("v_pk_add_f32 v[8:9], v[8:9], v[12:13]\nv_pk_add_f32 v[10:11], v[10:11], v[14:15]")
        A("v_pk_add_f32 v[16:17], v[16:17], v[20:21]\nv_pk_add_f32 v[18:19], v[18:19], v[22:23]")
        A("v_pk_add_f32 v[8:9], v[8:9], v[16:17]\nv_pk_add_f32 v[10:11], v[10:11], v[18:19]")
        A("v_cvt_pk_bf16_f32 v8, v8, v9\nv_cvt_pk_bf16_f32 v9, v10, v11\nv_lshlrev_b32 v10, 3, v0")
        A(f"ds_write_b64 v10, v[8:9] offset:{L_Q}\ns_waitcnt lgkmcnt(0)")
    with weq(0):
        q_laddr(0)
        for t in q_loads(0): A(t, tag="q0")
    with weq(7):
        A("v_and_b32 v8, 31, v0\ns_lshl_b32 s68, s4, 5\nv_add_u32 v8, s68, v8")
        A(f"v_lshlrev_b32 v6, 7, v8\ns_mov_b32 s71, {FLAGS}")
        A("buffer_load_dwordx2 v[4:5], v6, s[16:19], s71 offen sc1", tag="fl")
    v_loads(range(max(qpos, vearly), 4))
    def w_first():
        if P.get("nowt"): return
        with cls(1):
            A(f"s_lshl_b32 s15, s4, 1\ns_add_u32 s15, s15, s11\ns_mul_i32 s15, s15, {256*1152}\ns_lshl_b32 s28, s10, 7\ns_add_u32 s15, s15, s28")
            srd_tmp(40, "s15", 4718592)
            w_lane(1152, 32)
            w_step(SL + 8, 1152, 0, "wo")
        with cls(2):
            A("s_mul_i32 s15, s4, 1152\ns_lshl_b32 s28, s12, 7\ns_add_u32 s15, s15, s28")
            srd_tmp(44, "s15", 5308416)
            w_lane(9216, 96)
            for s in range(3): w_step(SL + 8 + 16 * s, 9216, 32 * s, "w1")
    def w2_loads():
        A(f"s_lshl_b32 s15, s4, 1\ns_add_u32 s15, s15, s11\ns_mul_i32 s15, s15, {288*1152}\ns_lshl_b32 s28, s10, 7\ns_add_u32 s15, s15, s28")
        srd_tmp(48, "s15", 5308416)
        w_lane(1152, 32, 43)
        w_step(SL + 24, 1152, 0, "w2", va=43)
        with weq(7):
            w_step(SL + 40, 1152, 32, "w2b", va=43)
    if wpos == 0: w_first()
    stamp(1, "loads issued")
    with weq(0):
        wait_cls("q0")
        lp = A.L("Lq0"); ld = A.L("Lq0d")
        A.label(lp)
        chk_tag([8, 12, 16, 20], 4)
        A(f"s_cbranch_vccz {ld}")
        A(f"s_sub_u32 s8, s8, 1\ns_cbranch_scc1 {ld}x")
        A.push_cond("never")
        for t in q_loads(0): A(t)
        A.pop_cond()
        A(f"s_waitcnt vmcnt(0)\ns_branch {lp}")
        A.label(ld + "x")
        A("s_mov_b32 s8, 0")
        A.label(ld)
        q_finish()

    def att(L):
        for k in range(44, 52): A(f"v_mov_b32 v{k}, 0")
        A(f"v_bfe_u32 v54, v0, 1, 1\nv_lshlrev_b32 v54, 8, v54\nv_lshl_add_u32 v54, v2, 4, v54")
        A("s_barrier")
        stamp(2 + L, "att start")
        for s in range(4):
            A(f"ds_read_b128 v[{8+4*s}:{11+4*s}], v54 offset:{L_Q+64*s}")
        def sel(t, r):
            A(f"v_mov_b32_dpp v{24+r}, v{24+4*t+r} quad_perm:[0,1,2,3] row_mask:0xf bank_mask:{1<<t:#x}")
        if L == 0: wait_cls("K3")
        for t in range(4):
            for s in range(4):
                if t == 0: A(f"s_waitcnt lgkmcnt({3-s})")
                d = 24 + 4 * t
                A(f"v_mfma_f32_16x16x32_bf16 v[{d}:{d+3}], v[{KR+16*t+4*s}:{KR+16*t+4*s+3}], v[{8+4*s}:{11+4*s}], " + ("0" if s == 0 else f"v[{d}:{d+3}]"))
                if t == 3 and s < 2:
                    sel(1, 2 * s); sel(1, 2 * s + 1)
                if t == 3 and s >= 2:
                    sel(2, 2 * (s - 2)); sel(2, 2 * (s - 2) + 1)
        for r in range(4): sel(3, r)
        A("v_max3_f32 v52, v24, v25, v26\nv_max_f32 v52, v52, v27")
        A("v_max_f32_dpp v52, v52, v52 row_ror:4 row_mask:0xf bank_mask:0xf")
        A("v_max_f32_dpp v52, v52, v52 row_ror:8 row_mask:0xf bank_mask:0xf")
        A("v_mov_b32 v54, v52\nv_permlane16_swap_b32 v54, v52\nv_max_f32 v52, v52, v54")
        A("v_mov_b32 v54, v52\nv_permlane32_swap_b32 v54, v52\nv_max_f32 v52, v52, v54")
        for r in range(4): A(f"v_sub_f32 v{24+r}, v{24+r}, v52")
        for r in range(4): A(f"v_exp_f32 v{24+r}, v{24+r}")
        for r in range(4): A(f"v_cvt_pk_bf16_f32 v{28+r}, v{24+r}, v{24+r}")
        def abuild(k):
            t, r = divmod(k, 4); buf = 44 + 4 * (k & 1)
            for a in range(4):
                n = 4 * ((a - t) & 3)
                mod = f"row_ror:{n}" if n else "quad_perm:[0,1,2,3]"
                A(f"v_and_b32_dpp v{buf+a}, v{28+r}, v3 {mod} row_mask:0xf bank_mask:{1<<a:#x}")
        def pv():
            extra = ["v_add_f32 v53, v24, v25", "v_add_f32 v54, v26, v27", "v_add_f32 v53, v53, v54",
                     "v_add_f32_dpp v53, v53, v53 row_ror:4 row_mask:0xf bank_mask:0xf",
                     "v_add_f32_dpp v53, v53, v53 row_ror:8 row_mask:0xf bank_mask:0xf",
                     "v_mov_b32 v54, v53", "v_permlane16_swap_b32 v54, v53", "v_add_f32 v53, v53, v54",
                     "v_mov_b32 v54, v53", "v_permlane32_swap_b32 v54, v53", "v_add_f32 v53, v53, v54",
                     f"v_lshlrev_b32 v8, 4, v0", "s_lshl_b32 s15, s3, 10", "v_add_u32 v8, s15, v8",
                     "v_lshlrev_b32 v9, 5, v0", "s_lshl_b32 s15, s3, 3", "v_add_u32 v9, s15, v9"]
            abuild(0); abuild(1)
            for k in range(16):
                t, r = divmod(k, 4); buf = 44 + 4 * (k & 1)
                if L == 0 and (t >= qpos or k == 0): A.wait_vm(f"V{t}{r}" if t >= qpos else f"V{qpos-1}3")
                A(f"v_mfma_f32_16x16x32_bf16 v[40:43], v[{buf}:{buf+3}], v[{VR+16*t+4*r}:{VR+16*t+4*r+3}], " + ("0" if k == 0 else "v[40:43]"))
                if k + 2 < 16: abuild(k + 2)
                for _ in range(2 if k >= 12 else 1):
                    if extra: A(extra.pop(0))
            while extra: A(extra.pop(0))
        if L == 0 and wpos == 0:
            for c in range(3):
                with cls(c): pv()
        else:
            pv()
        if L == 0: stamp(13, "pv done")
        A("s_mov_b64 exec, 5")
        A(f"ds_write_b64 v9, v[52:53] offset:{L_ST}")
        fullexec()
        A(f"ds_write_b128 v8, v[40:43] offset:{L_O}")
        if L == 0:
            with weq(7):
                lp = A.L("Lfl"); ld = A.L("Lfld")
                A.wait_vm("fl")
                A.label(lp)
                A("v_cmp_ne_u32 vcc, s7, v4")
                A(f"s_cbranch_vccz {ld}")
                A(f"s_sub_u32 s8, s8, 1\ns_cbranch_scc1 {ld}x")
                A.push_cond("never")
                A("buffer_load_dwordx2 v[4:5], v6, s[16:19], s71 offen sc1")
                A.pop_cond()
                A(f"s_waitcnt vmcnt(0)\ns_branch {lp}")
                A.label(ld + "x")
                A("s_mov_b32 s8, 0")
                A.label(ld)
                A("v_cmp_ne_u32 vcc, s67, v5")
                A("s_nop 3\nv_mov_b32 v4, vcc_lo\nv_mov_b32 v5, 0")
                if P.get("force_slow"): A("v_mov_b32 v4, 1")
                A(f"ds_write_b32 v5, v4 offset:{L_MODE}")
            if wpos == 1: w_first()
        A("s_waitcnt lgkmcnt(0)")
        A(f"v_lshlrev_b32 v46, 4, v0\ns_lshl_b32 s15, s3, 3\nv_add_u32 v46, s15, v46")
        A(f"v_and_b32 v47, 7, v0\nv_lshlrev_b32 v47, 3, v47\ns_lshl_b32 s15, s3, 6\nv_add_u32 v47, s15, v47")
        A("s_barrier")
        if L == 0:
            A(f"v_mov_b32 v5, 0\nds_read_b32 v4, v5 offset:{L_MODE}")
        with wlt(2):
            A(f"ds_read_b64 v[52:53], v47 offset:{L_ST}")
            for w in range(8):
                A(f"ds_read_b64 v[{8+2*w}:{9+2*w}], v46 offset:{L_O+1024*w}")
            A("s_lshl_b32 s68, s65, 1\ns_add_u32 s68, s68, s3")
            A(f"s_lshl_b32 s69, s68, 12\ns_lshl_b32 s70, s64, 10\ns_add_u32 s69, s69, s70\ns_lshl_b32 s70, s66, 8\ns_add_u32 s69, s69, s70\ns_add_u32 s69, s69, s14\ns_add_u32 s69, s69, {O_OFF[L]}")
            A(f"s_lshl_b32 s70, s68, 6\ns_lshl_b32 s71, s64, 4\ns_add_u32 s70, s70, s71\ns_lshl_b32 s71, s66, 2\ns_add_u32 s70, s70, s71\ns_add_u32 s70, s70, s14\ns_add_u32 s70, s70, {LSE_OFF[L]}")
            A("v_lshlrev_b32 v44, 4, v1\nv_lshl_add_u32 v44, v2, 2, v44")
            A("s_waitcnt lgkmcnt(8)")
            A("v_max_f32_dpp v54, v52, v52 quad_perm:[1,0,3,2] row_mask:0xf bank_mask:0xf")
            A("v_max_f32_dpp v54, v54, v54 quad_perm:[2,3,0,1] row_mask:0xf bank_mask:0xf")
            A("v_max_f32_dpp v54, v54, v54 row_half_mirror row_mask:0xf bank_mask:0xf")
            A("v_sub_f32 v52, v52, v54\nv_exp_f32 v52, v52\nv_mul_f32 v53, v53, v52")
            A("v_add_f32_dpp v53, v53, v53 quad_perm:[1,0,3,2] row_mask:0xf bank_mask:0xf")
            A("v_add_f32_dpp v53, v53, v53 quad_perm:[2,3,0,1] row_mask:0xf bank_mask:0xf")
            A("v_add_f32_dpp v53, v53, v53 row_half_mirror row_mask:0xf bank_mask:0xf")
            A("v_rcp_f32 v45, v53\nv_log_f32 v53, v53\nv_mul_f32 v52, v52, v45")
            for w in range(8): A(f"v_readlane_b32 s{20+w}, v52, {w}")
            A("v_add_f32 v53, v53, v54")
            A("s_waitcnt lgkmcnt(0)")
            if L == 0: A("v_readfirstlane_b32 s9, v4")
            A("v_mul_f32 v24, s20, v8\nv_mul_f32 v25, s20, v9")
            for w in range(1, 8):
                A(f"v_fmac_f32 v24, s{20+w}, v{8+2*w}\nv_fmac_f32 v25, s{20+w}, v{9+2*w}")
            A("v_cvt_pk_bf16_f32 v24, v24, v25")
            hstore("buffer_store_dword v24, v44, s[16:19], s69 offen")
            A("s_mov_b64 exec, 1")
            hstore("buffer_store_dword v53, off, s[16:19], s70")
            fullexec()
            stamp(4 + 2 * L, "O stored")
        if L == 0:
            A("s_waitcnt lgkmcnt(0)\nv_readfirstlane_b32 s9, v4")
            with cls(1):
                A("s_waitcnt vmcnt(0)"); w_perm(SL, SL + 8)
            with cls(2):
                A("s_waitcnt vmcnt(0)")
                for s in range(3): w_perm(SL + 16 * s, SL + 16 * s + 8)
                for k in range(12, 16): A(f"v_mov_b32 v{k}, 0x3f803f80")
                for s in range(3): mma4(24, 12, SL + 16 * s, s == 0)
                tile_addr(47); A(f"v_add_u32 v47, {L_CS}, v47")
                tile_wr(24, 47)

    def part_addr(slot):
        A("v_lshrrev_b32 v44, 3, v1\nv_lshlrev_b32 v44, 13, v44\nv_lshl_add_u32 v44, v2, 7, v44\nv_and_b32 v43, 7, v1\nv_lshl_add_u32 v44, v43, 4, v44")
        A(f"s_lshl_b32 s68, s10, 14\ns_lshl_b32 s69, s4, 10\ns_add_u32 s68, s68, s69\ns_lshl_b32 s69, s11, 9\ns_add_u32 s68, s68, s69\ns_add_u32 s68, s68, {AREA_A + slot*SLOT_SZ}")
    def part_final(st):
        A("v_lshlrev_b32 v46, 4, v0")
        tile_sum(8, L_T, 46, 8); tile_add(8, 8)
        A("v_and_or_b32 v8, v8, v55, s6")
        A("buffer_store_dwordx4 v[8:11], v44, s[16:19], s68 offen sc1")
        stamp(st, "partial stored")

    def wo_stage(L):
        with isWO():
            A("s_lshr_b32 s68, s3, 2\ns_lshl_b32 s69, s11, 1\ns_add_u32 s68, s68, s69\ns_and_b32 s69, s3, 3")
            A(f"s_lshl_b32 s70, s68, 12\ns_lshl_b32 s69, s69, 6\ns_add_u32 s70, s70, s69\ns_add_u32 s70, s70, s14\ns_add_u32 s70, s70, {O_OFF[L]}")
            A(f"s_lshl_b32 s71, s68, 6\ns_add_u32 s71, s71, s14\ns_add_u32 s71, s71, {LSE_OFF[L]}")
            A("v_lshlrev_b32 v42, 8, v1\nv_lshl_add_u32 v42, v2, 4, v42\nv_lshlrev_b32 v45, 4, v2")
            tile_addr(46)
            part_addr(SLOT_PO[L])
            poll(["buffer_load_dwordx4 v[8:11], v42, s[16:19], s70 offen sc1",
                  "buffer_load_dwordx4 v[16:19], v45, s[16:19], s71 offen sc1"], [8, 9, 10, 11, 16, 17, 18, 19], 47)
            if trace:
                with wlt(6): stamp(8 + L, "wo poll done")
            mma4(24, 8, SL, True)
            A("v_max3_f32 v20, v16, v17, v18\nv_max_f32 v20, v20, v19")
            for r in range(4): A(f"v_sub_f32 v{16+r}, v{16+r}, v20")
            for r in range(4): A(f"v_exp_f32 v{16+r}, v{16+r}")
            A("v_add_f32 v20, v16, v17\nv_add_f32 v21, v18, v19\nv_add_f32 v20, v20, v21\nv_rcp_f32 v20, v20")
            A("v_pk_mul_f32 v[16:17], v[16:17], v[20:21] op_sel_hi:[1,0]\nv_pk_mul_f32 v[18:19], v[18:19], v[20:21] op_sel_hi:[1,0]")
            if L == 0 and w2pos == 0: w2_loads()
            for c in range(4):
                A(f"v_pk_mul_f32 v[{24+4*c}:{25+4*c}], v[{24+4*c}:{25+4*c}], v[16:17]")
            for c in range(4):
                A(f"v_pk_fma_f32 v[{24+4*c}:{25+4*c}], v[{26+4*c}:{27+4*c}], v[18:19], v[{24+4*c}:{25+4*c}]")
            for c in range(4):
                A(f"v_add_f32 v{12+c}, v{24+4*c}, v{25+4*c}")
            A(f"ds_write_b128 v46, v[12:15] offset:{L_T}")
            A("s_waitcnt lgkmcnt(0)\ns_barrier")
            with weq(0):
                part_final(5 + 2 * L)
            if L == 0:
                if w2pos == 2: A("s_barrier")
                if w2pos >= 1: w2_loads()
                A("s_waitcnt vmcnt(0)")
                w_perm(SL + 16, SL + 24)
                with weq(7): w_perm(SL + 32, SL + 40)

    def r_stage(L, kind):
        final = (L == 1 and kind == 1)
        slot = (SLOT_PO if kind == 0 else SLOT_P2)[L]
        def body():
            A(f"s_lshl_b32 s68, s13, 13\ns_add_u32 s68, s68, {AREA_A + slot*SLOT_SZ}\ns_add_u32 s71, s68, 4096")
            A("v_lshlrev_b32 v44, 4, v0")
            if not final:
                xo = X1_OFF[L] if kind == 0 else X2_OFF
                so = XS1_OFF[L] if kind == 0 else XS2_OFF
                A(f"s_add_u32 s69, s14, {xo}\ns_lshl_b32 s70, s13, 3\ns_add_u32 s70, s70, s14\ns_add_u32 s70, s70, {so}")
                A("v_lshlrev_b32 v45, 5, v0")
            else:
                A("s_mov_b32 s28, s52\ns_mov_b32 s29, s53\ns_mov_b32 s30, 4608\ns_mov_b32 s31, 0x20000")
            A(f"v_lshlrev_b32 v40, 16, v{SL}\nv_and_b32 v41, 0xffff0000, v{SL}")
            if kind == 1:
                A(f"v_lshlrev_b32 v42, 16, v{SL+1}\nv_and_b32 v43, 0xffff0000, v{SL+1}")
            poll([f"buffer_load_dwordx4 v[{8+4*u}:{11+4*u}], v44, s[16:19], s{68 if u < 4 else 71} offen offset:{1024*(u&3)} sc1" for u in range(8)],
                 range(8, 40, 4), 46, tagged=True)
            stamp(8 + 2 * L + kind, "R poll done")
            for st in (4, 8, 16):
                for u in range(8, 40, 2 * st):
                    A(f"v_pk_add_f32 v[{u}:{u+1}], v[{u}:{u+1}], v[{u+st}:{u+st+1}]\nv_pk_add_f32 v[{u+2}:{u+3}], v[{u+2}:{u+3}], v[{u+st+2}:{u+st+3}]")
            A("v_permlane32_swap_b32 v8, v10\nv_permlane32_swap_b32 v9, v11")
            A("v_add_f32 v8, v8, v10\nv_add_f32 v9, v9, v11")
            A("v_cvt_pk_bf16_f32 v8, v8, v9")
            A("v_and_b32 v9, 0xffff0000, v8\nv_lshlrev_b32 v8, 16, v8")
            if kind == 1:
                A("v_add_f32 v8, v8, v42\nv_add_f32 v9, v9, v43\nv_cvt_pk_bf16_f32 v8, v8, v9")
                A("v_and_b32 v9, 0xffff0000, v8\nv_lshlrev_b32 v8, 16, v8")
            A(f"v_add_f32 v8, v8, v40\nv_add_f32 v9, v9, v41\nv_cvt_pk_bf16_f32 v{SL}, v8, v9")
            if final:
                A(f"buffer_store_dword v{SL}, v{SL+2}, s[28:31], 0 offen")
                with Cond("e", "s_cmp_eq_u32 s13, 0"):
                    A("v_mov_b32 v8, s7\ns_mov_b64 exec, 1")
                    A("buffer_store_dword v8, off, s[16:19], 0 sc1")
                    fullexec()
            else:
                hstore(f"buffer_store_dword v{SL}, v{SL+2}, s[16:19], s69 offen")
                A(f"v_lshlrev_b32 v8, 16, v{SL}\nv_and_b32 v9, 0xffff0000, v{SL}")
                A("v_add_f32 v10, v8, v9\nv_mul_f32 v11, v8, v8\nv_fmac_f32 v11, v9, v9")
                for mod in ("quad_perm:[1,0,3,2]", "quad_perm:[2,3,0,1]", "row_half_mirror"):
                    A(f"v_add_f32_dpp v10, v10, v10 {mod} row_mask:0xf bank_mask:0xf")
                    A(f"v_add_f32_dpp v11, v11, v11 {mod} row_mask:0xf bank_mask:0xf")
                A("v_mov_b32 v12, v10\nv_mov_b32 v13, v11")
                A("v_permlane32_swap_b32 v12, v10\nv_permlane32_swap_b32 v13, v11")
                A("v_add_f32 v10, v10, v12\nv_add_f32 v11, v11, v13")
                setexec(0x01010101, 0)
                hstore("buffer_store_dwordx2 v[10:11], v45, s[16:19], s70 offen")
                fullexec()
            stamp(4 + 2 * L + kind, "R done")
        with isR():
            if final:
                A("s_and_b32 s68, s13, 7")
                with Cond("fin", "s_cmp_eq_u32 s68, s4"): body()
            else:
                body()

    def stats_poll(so):
        A(f"v_lshlrev_b32 v44, 8, v2\nv_lshl_add_u32 v44, v1, 4, v44\ns_add_u32 s68, s14, {so}")
        for k in range(8, 12): A(f"v_mov_b32 v{k}, 0")
        setexec(0x01ff01ff, 0x01ff01ff)
        poll(["buffer_load_dwordx4 v[8:11], v44, s[16:19], s68 offen sc1"], range(8, 12), 47)
        fullexec()
        A("v_add_f32 v48, v8, v10\nv_add_f32 v49, v9, v11")
        row_reduce2(48, 49)
        stats_finish()

    def w1_stage(L):
        with isW1():
            with wlt(6):
                tile_addr(45); xfrag_off(46)
                A(f"v_add_u32 v45, {L_T}, v45\ns_mul_i32 s15, s3, 192\ns_add_u32 s15, s15, s14\ns_add_u32 s15, s15, {X1_OFF[L]}")
                poll([f"buffer_load_dwordx4 v[{8+4*s}:{11+4*s}], v46, s[16:19], s15 offen offset:{64*s} sc1" for s in range(3)], range(8, 20), 47)
                if L == 0: stamp(10, "w1 polled")
                for s in range(3): mma4(24, 8 + 4 * s, SL + 16 * s, s == 0)
                tile_wr(24, 45)
                A("s_waitcnt lgkmcnt(0)\ns_barrier")
            with weq(7):
                A("s_barrier")
            with weq(6):
                A(f"v_mul_u32_u24 v45, 1152, v2\nv_lshl_add_u32 v45, v1, 3, v45\ns_lshl_b32 s69, s12, 7\ns_add_u32 s69, s69, s14\ns_add_u32 s69, s69, {H_OFF[L]}")
                if L == 0:
                    A("s_waitcnt vmcnt(0)")
                    A("v_and_b32 v91, 0xffff0000, v89\nv_lshlrev_b32 v90, 16, v89\nv_and_b32 v89, 0xffff0000, v88\nv_lshlrev_b32 v88, 16, v88")
                A(f"s_mov_b32 s70, {f2u(-2*LOG2E*math.sqrt(2/math.pi)*0.044715):#x}\nv_mov_b32 v50, {f2u(-2*LOG2E*math.sqrt(2/math.pi)):#x}\nv_mov_b32 v52, s70\nv_mov_b32 v53, 1.0")
                A("v_lshlrev_b32 v46, 4, v0")
                stats_poll(XS1_OFF[L])
                A("s_barrier")
                tile_sum(6, L_T, 46, 8)
                if L == 0:
                    tile_sum(6, L_CS, 46, 60)
                    tile_add(6, 8, after=6); tile_add(6, 60)
                else:
                    tile_add(6, 8)
                ln_fix(60)
                for h in (0, 2):
                    A(f"v_pk_fma_f32 v[{8+h}:{9+h}], v[{8+h}:{9+h}], v[48:49], v[{88+h}:{89+h}] op_sel:[0,1,0] op_sel_hi:[1,1,1]")
                for h in (0, 2): A(f"v_pk_mul_f32 v[{12+h}:{13+h}], v[{8+h}:{9+h}], v[{8+h}:{9+h}]")
                for h in (0, 2): A(f"v_pk_fma_f32 v[{12+h}:{13+h}], v[{12+h}:{13+h}], v[52:53], v[50:51] op_sel_hi:[1,0,0]")
                for h in (0, 2): A(f"v_pk_mul_f32 v[{12+h}:{13+h}], v[{12+h}:{13+h}], v[{8+h}:{9+h}]")
                for k in range(4): A(f"v_exp_f32 v{12+k}, v{12+k}")
                for h in (0, 2): A(f"v_pk_add_f32 v[{12+h}:{13+h}], v[{12+h}:{13+h}], v[52:53] op_sel:[0,1] op_sel_hi:[1,1]")
                for k in range(4): A(f"v_rcp_f32 v{12+k}, v{12+k}")
                for h in (0, 2): A(f"v_pk_mul_f32 v[{8+h}:{9+h}], v[{8+h}:{9+h}], v[{12+h}:{13+h}]")
                A("v_cvt_pk_bf16_f32 v8, v8, v9\nv_cvt_pk_bf16_f32 v9, v10, v11")
                hstore("buffer_store_dwordx2 v[8:9], v45, s[16:19], s69 offen")
                stamp(5 + 3 * L, "H stored")

    def w2_stage(L):
        with isWO():
            tile_addr(45); xfrag_off(46)
            A(f"v_add_u32 v45, {L_T}, v45\ns_mul_i32 s15, s11, 576\ns_lshl_b32 s70, s3, 6\ns_add_u32 s15, s15, s70\ns_add_u32 s15, s15, s14\ns_add_u32 s15, s15, {H_OFF[L]}")
            part_addr(SLOT_P2[L])
            with wne(7):
                poll(["buffer_load_dwordx4 v[8:11], v46, s[16:19], s15 offen sc1"], range(8, 12), 47)
                if L == 0: stamp(11, "w2 polled")
                mma4(24, 8, SL + 16, True)
            with weq(7):
                poll(["buffer_load_dwordx4 v[8:11], v46, s[16:19], s15 offen sc1", "buffer_load_dwordx4 v[12:15], v46, s[16:19], s15 offen offset:64 sc1"], range(8, 16), 47)
                mma4(24, 8, SL + 16, True)
                mma4(24, 12, SL + 32, False)
            tile_wr(24, 45)
            A("s_waitcnt lgkmcnt(0)\ns_barrier")
            with weq(0):
                part_final(10 + 2 * L)

    def wq_stage():
        with wlt(5):
            tile_addr(45); xfrag_off(46)
            A(f"v_add_u32 v45, {L_T}, v45\ns_mul_i32 s15, s66, 288\ns_lshl_b32 s70, s3, 6\ns_add_u32 s15, s15, s70\ns_add_u32 s15, s15, s14\ns_add_u32 s15, s15, {X2_OFF}")
            for k in range(8, 12): A(f"v_mov_b32 v{k}, 0")
            A("s_cmp_eq_u32 s3, 4\ns_cselect_b32 exec_hi, 0, -1")
            poll(["buffer_load_dwordx4 v[8:11], v46, s[16:19], s15 offen sc1"], range(8, 12), 47)
            fullexec()
            if trace:
                with wne(0): stamp(12, "wq polled")
            mma4(24, 8, WQF, True)
            tile_wr(24, 45)
            A("s_waitcnt lgkmcnt(0)")
        with wne(6):
            A("s_barrier")
        with weq(6):
            A("v_lshlrev_b32 v46, 4, v0")
            stats_poll(XS2_OFF)
            A(f"v_mul_f32 v49, {f2u(QSCALE):#x}, v49")
            q_addr(1)
            A("s_barrier")
            tile_sum(5, L_T, 46, 8); tile_add(5, 8)
            ln_fix(56)
            q_out()
            hstore("buffer_store_dwordx4 v[8:11], v44, s[16:19], s70 offen")
            stamp(7, "Q1 stored")

    def q1_fetch():
        with weq(0):
            q_laddr(1)
            poll(q_loads(1), [8, 12, 16, 20], 4, tagged=True)
            q_finish()

    stages = [lambda: att(0), lambda: wo_stage(0), lambda: r_stage(0, 0), lambda: w1_stage(0), lambda: w2_stage(0),
              lambda: r_stage(0, 1), wq_stage, q1_fetch,
              lambda: att(1), lambda: wo_stage(1), lambda: r_stage(1, 0), lambda: w1_stage(1), lambda: w2_stage(1), lambda: r_stage(1, 1)]
    names = ["att0", "wo0", "r00", "w10", "w20", "r01", "wq", "q1", "att1", "wo1", "r10", "w11", "w21", "r11"]
    for k, st in enumerate(stages):
        if k >= stop: break
        A.c(f"======== stage {names[k]} ========")
        st()
    if trace:
        A("s_waitcnt lgkmcnt(0)\nv_mov_b32 v8, 0")
        for k in range(14):
            A(f"v_writelane_b32 v8, s{74+2*k}, {k}")
        A(f"s_lshl_b32 s68, s2, 3\ns_add_u32 s68, s68, s3\ns_lshl_b32 s68, s68, 6\ns_add_u32 s68, s68, {TRACE}\nv_lshlrev_b32 v9, 2, v0")
        A("s_mov_b64 exec, 0xffff\nbuffer_store_dword v8, v9, s[16:19], s68 offen")
    A.label("L_end")
    A("s_endpgm")
    A.raw(f""".section .rodata,"a"
.p2align 6
.amdhsa_kernel {NAME}_kernel
  .amdhsa_next_free_vgpr 256
  .amdhsa_next_free_sgpr 102
  .amdhsa_accum_offset 256
  .amdhsa_group_segment_fixed_size 0
  .amdhsa_kernarg_size 104
  .amdhsa_user_sgpr_count 2
  .amdhsa_user_sgpr_kernarg_segment_ptr 1
  .amdhsa_system_sgpr_workgroup_id_x 1
.end_amdhsa_kernel""")
    return A

if __name__ == "__main__":
    import json
    P = json.loads(sys.argv[2]) if len(sys.argv) > 2 else {}
    A = gen(P)
    open(sys.argv[1], "w").write(A.text())
    print("instrs", len(A.ins), "nop states", A.nnops)
```

```python
import sys, math, struct
sys.path.insert(0, "gen")
from asmlib import Asm

NAME = "interleave_layers__sliding_block_cached__dense_activation_gelu__decode"
VER = 3
FLAGS = 0x1000; QA = [0x10000, 0x50000]; AREA_A = 0x90000; SLOT_SZ = 18 * 8192; AREA_B = 0x120000; TRACE = 0x1A0000; WS_SIZE = 0x1C0000
O_OFF = [0, 16384]; X1_OFF = [36864, 46080]; X2_OFF = 41472; H_OFF = [50688, 55296]
LSE_OFF = [59904, 60160]; XS1_OFF = [60416, 62464]; XS2_OFF = 61440
SLOT_PO = [0, 1]; SLOT_P2 = [2, 3]
L_Q = 0; L_ST = 512; L_MODE = 640; L_CNT = 648; L_O = 1024; L_T = 9216; L_CS = 17408; LDS_SIZE = 23552
WQF = 56; SL = 72
KR, VR = 128, 192
def f2u(f): return struct.unpack("<I", struct.pack("<f", f))[0]
LOG2E = 1.4426950408889634
QSCALE = (128 ** -0.5) * LOG2E

def gen(P):
    A = Asm()
    trace = P.get("trace", 0)
    stop = P.get("stop", 99)
    kearly = P.get("kearly", 2); qpos = P.get("qpos", 2); wpos = P.get("wpos", 2); w2pos = P.get("w2pos", 1)
    flow = P.get("flow", 1); w1early = P.get("w1early", 0); w1gate = P.get("w1gate", 0); rgate = P.get("rgate", 0)
    rdel = P.get("rdel", [0, 0, 0, 0]); rint = P.get("rint", 4)
    WNT = " nt" if P.get("wnt", 1) else ""
    KNT = P.get("knt", " nt")
    def stamp(k, name=""):
        if trace:
            A(f"s_memrealtime s[{74+2*k}:{75+2*k}]")
            A.c(f"stamp {k} {name}")
    class Cond:
        def __init__(s, name, test): s.name = name; s.test = test
        def __enter__(s):
            s.l = A.L("Lskip")
            A(s.test); A(f"s_cbranch_scc0 {s.l}"); A.push_cond(s.name)
        def __exit__(s, *a):
            A.pop_cond(); A.label(s.l)
    isWO = lambda: Cond("wo", "s_cmp_lt_u32 s5, 18")
    isW1 = lambda: Cond("w1", "s_cmp_lt_u32 s12, 9")
    isR = lambda: Cond("r", "s_cmp_lt_u32 s13, 18")
    cls = lambda k: Cond({0: "c0", 1: "wo", 2: "w1c"}[k], f"s_cmp_eq_u32 s72, {k}")
    wlt = lambda n: Cond(f"w<{n}", f"s_cmp_lt_u32 s3, {n}")
    weq = lambda n: Cond(f"w={n}", f"s_cmp_eq_u32 s3, {n}")
    wne = lambda n: Cond(f"w!{n}", f"s_cmp_lg_u32 s3, {n}")
    def setexec(lo, hi):
        A(f"s_mov_b32 exec_lo, {lo:#x}\ns_mov_b32 exec_hi, {hi:#x}")
    def fullexec(): A("s_mov_b64 exec, -1")
    def hstore(text):
        l1 = A.L("Lsl"); l2 = A.L("Lsd")
        A(f"s_cmp_lg_u32 s9, 0\ns_cbranch_scc1 {l1}")
        A(text)
        A(f"s_branch {l2}")
        A.label(l1)
        A.push_cond("never"); A(text + " sc1"); A.pop_cond()
        A.label(l2)
    def chk_sent(regs, tmp):
        rs = list(regs); first = True
        while rs:
            if first:
                if len(rs) >= 3: A(f"v_max3_u32 v{tmp}, v{rs[0]}, v{rs[1]}, v{rs[2]}"); rs = rs[3:]
                else: A(f"v_max_u32 v{tmp}, v{rs[0]}, v{rs[1]}"); rs = rs[2:]
                first = False
            elif len(rs) >= 2: A(f"v_max3_u32 v{tmp}, v{tmp}, v{rs[0]}, v{rs[1]}"); rs = rs[2:]
            else: A(f"v_max_u32 v{tmp}, v{tmp}, v{rs[0]}"); rs = rs[1:]
        A(f"v_cmp_eq_u32 vcc, -1, v{tmp}")
    def chk_tag(regs, tmp):
        rs = list(regs)
        for r in rs: A(f"v_xor_b32 v{r}, s6, v{r}")
        A(f"v_or3_b32 v{tmp}, v{rs[0]}, v{rs[1]}, v{rs[2]}"); rs = rs[3:]
        while rs:
            if len(rs) >= 2: A(f"v_or3_b32 v{tmp}, v{tmp}, v{rs[0]}, v{rs[1]}"); rs = rs[2:]
            else: A(f"v_or_b32 v{tmp}, v{tmp}, v{rs[0]}"); rs = rs[1:]
        A(f"v_and_b32 v{tmp}, 0xff, v{tmp}\nv_cmp_ne_u32 vcc, 0, v{tmp}")
    def poll(loads, regs, tmp, tagged=False):
        lp = A.L("Lpoll"); ld = A.L("Lpd")
        A.label(lp)
        for t in loads: A(t)
        A("s_waitcnt vmcnt(0)")
        (chk_tag if tagged else chk_sent)(regs, tmp)
        A(f"s_cbranch_vccz {ld}")
        A(f"s_sub_u32 s8, s8, 1\ns_cbranch_scc0 {lp}\ns_mov_b32 s8, 0")
        A.label(ld)

    hdr = open(f"cdna_kernels/{NAME}.s.ref").read().split("\n")
    for ln in hdr:
        if ln.startswith("; @launch"): break
        A.raw(ln)
    A.raw(f"; @launch grid=(256,1,1) block=(512,1,1) lds={LDS_SIZE}")
    A.raw('.amdgcn_target "amdgcn-amd-amdhsa--gfx950"')
    A.raw(f".text\n.globl {NAME}_kernel\n.p2align 8\n.type {NAME}_kernel,@function\n{NAME}_kernel:")
    A("s_cmp_ge_u32 s2, 256\ns_cbranch_scc1 L_end")
    A("s_load_dwordx2 s[56:57], s[0:1], 96\ns_load_dwordx16 s[32:47], s[0:1], 0\ns_load_dwordx8 s[48:55], s[0:1], 64")
    if trace:
        for k in range(1, 14): A(f"s_mov_b32 s{74+2*k}, 0")
    stamp(0, "start")
    A("v_lshrrev_b32 v1, 6, v0\nv_and_b32 v0, 63, v0\nv_readfirstlane_b32 s3, v1")
    A("v_and_b32 v1, 15, v0\nv_lshrrev_b32 v2, 4, v0")
    A("s_and_b32 s4, s2, 7\ns_lshr_b32 s5, s2, 3")
    A("s_mov_b32 s8, 150000\ns_mov_b32 s9, 1")
    A("s_cmp_ge_u32 s5, 9\ns_cselect_b32 s11, 1, 0\ns_mul_i32 s10, s11, 9\ns_sub_u32 s10, s5, s10")
    A("s_sub_u32 s12, s5, 18")
    A("s_mov_b32 s13, 99\ns_cmp_eq_u32 s3, 7\ns_cselect_b32 s13, s12, s13")
    A("s_sub_u32 s15, s5, 13\ns_cmp_ge_u32 s5, 27\ns_cselect_b32 s15, s15, 99\ns_cmp_eq_u32 s3, 5\ns_cselect_b32 s13, s15, s13")
    A("s_cmp_lt_u32 s3, 6\ns_cselect_b32 s72, 2, 0\ns_cmp_lt_u32 s12, 9\ns_cselect_b32 s72, s72, 0\ns_cmp_lt_u32 s5, 18\ns_cselect_b32 s72, 1, s72")
    A(f"s_lshl_b32 s14, s4, 16\ns_add_u32 s14, s14, {AREA_B}")
    A("s_mov_b32 s58, 0x05040100\ns_mov_b32 s59, 0x07060302")
    A("s_bfe_u32 s64, s5, 0x20001\ns_and_b32 s65, s5, 1\ns_lshr_b32 s66, s5, 3")
    A("s_getreg_b32 s67, hwreg(HW_REG_XCC_ID)\ns_and_b32 s67, s67, 15")
    A("v_and_b32 v4, 1, v0\nv_lshlrev_b32 v4, 4, v4\nv_mov_b32 v3, 0xffff\nv_lshlrev_b32 v3, v4, v3")
    A("s_and_b32 s73, s5, 7\ns_lshl_b32 s60, s3, 12")
    tmap = P.get("tmap", 0)
    if tmap == 0:
        for t in range(1, 4):
            A(f"s_add_u32 s{60+t}, s60, {t << 15}")
    elif tmap == 1:
        A("s_lshl_b32 s60, s3, 14")
        for t in range(1, 4): A(f"s_add_u32 s{60+t}, s60, {t << 12}")
    elif tmap == 2:
        A("s_lshl_b32 s60, s3, 13\ns_add_u32 s61, s60, 4096\ns_add_u32 s62, s60, 65536\ns_add_u32 s63, s60, 69632")
    elif tmap >= 3:
        a, b = P.get("rot", [1, 0])
        A(f"s_mul_i32 s15, s5, {a}\ns_mul_i32 s61, s4, {b}\ns_add_u32 s15, s15, s61\ns_add_u32 s15, s15, s3")
        for t in range(4): A(f"s_add_u32 s{60+t}, s15, {8*t}\ns_and_b32 s{60+t}, s{60+t}, 31\ns_lshl_b32 s{60+t}, s{60+t}, 12")
    A("s_and_b32 s31, s3, 1")
    A("v_and_b32 v50, 3, v1\nv_lshlrev_b32 v50, 10, v50\nv_lshrrev_b32 v51, 2, v1\nv_lshl_add_u32 v50, v51, 8, v50\nv_lshl_add_u32 v50, v2, 4, v50\nv_lshlrev_b32 v51, 4, v0")
    def tile_addr(r=45): A(f"s_lshl_b32 s15, s3, 10\nv_lshl_add_u32 v{r}, v0, 4, s15")
    def xfrag_off(r=46): A(f"v_lshrrev_b32 v{r}, 2, v1\nv_mul_u32_u24 v{r}, 1152, v{r}\nv_lshl_add_u32 v{r}, v2, 4, v{r}")
    for k in [6, 44, 47, SL + 2] + list(range(8, 12)) + list(range(24, 40)): A(f"v_mov_b32 v{k}, 0")
    for k in range(12, 16): A(f"v_mov_b32 v{k}, 0x3f803f80")
    tile_addr(); xfrag_off()
    A("s_waitcnt lgkmcnt(0)")
    A(f"s_mov_b32 s16, s56\ns_mov_b32 s17, s57\ns_mov_b32 s18, {WS_SIZE}\ns_mov_b32 s19, 0x20000")

    def srd_tmp(ptr, offs, total):
        A(f"s_add_u32 s28, s{ptr}, {offs}\ns_addc_u32 s29, s{ptr+1}, 0\ns_sub_u32 s30, {total}, {offs}\ns_mov_b32 s31, 0x20000")
    def srd_x0(): A("s_mov_b32 s28, s32\ns_mov_b32 s29, s33\ns_mov_b32 s30, 4608\ns_mov_b32 s31, 0x20000")
    def w_step(land, stride, row0, tag, va=44):
        for ii in range(8):
            ro = (row0 + ii) * stride
            if stride * 3 < 4096:
                if ii % 4 == 0: A(f"s_mov_b32 s15, {ro}")
                A(f"buffer_load_dwordx2 v[{land+2*ii}:{land+2*ii+1}], v{va}, s[28:31], s15 offen offset:{(ii % 4) * stride}{WNT}", tag=tag)
            else:
                A(f"s_mov_b32 s15, {ro}")
                A(f"buffer_load_dwordx2 v[{land+2*ii}:{land+2*ii+1}], v{va}, s[28:31], s15 offen{WNT}", tag=tag)
    def w_lane(stride, rows_per_wave, va=44):
        A(f"v_mul_u32_u24 v{va}, {8*stride}, v2\nv_lshl_add_u32 v{va}, v1, 3, v{va}\ns_mul_i32 s15, s3, {rows_per_wave*stride}\nv_add_u32 v{va}, s15, v{va}")
    def w_perm(F, T):
        for d in range(2):
            for q in range(4):
                a = T + 4 * q + d; b = a + 2
                A(f"v_perm_b32 v{F+8*d+q}, v{b}, v{a}, s58\nv_perm_b32 v{F+8*d+4+q}, v{b}, v{a}, s59")
    def mma4(D, a, F, first):
        for c in range(4):
            d = D + 4 * c
            A(f"v_mfma_f32_16x16x32_bf16 v[{d}:{d+3}], v[{a}:{a+3}], v[{F+4*c}:{F+4*c+3}], " + ("0" if first else f"v[{d}:{d+3}]"))
    def tile_wr(D, va):
        A(f"ds_write2_b32 v{va}, v{D}, v{D+4} offset0:0 offset1:1\nds_write2_b32 v{va}, v{D+8}, v{D+12} offset0:2 offset1:3")
    def tile_sum(n, base, va, dst=8):
        for w in range(n):
            A(f"ds_read_b128 v[{dst+4*w}:{dst+4*w+3}], v{va} offset:{base+1024*w}")
        return n
    def tile_add(n, dst=8, after=0):
        for w in range(1, n):
            A(f"s_waitcnt lgkmcnt({n-1-w+after})")
            A(f"v_pk_add_f32 v[{dst}:{dst+1}], v[{dst}:{dst+1}], v[{dst+4*w}:{dst+4*w+1}]\nv_pk_add_f32 v[{dst+2}:{dst+3}], v[{dst+2}:{dst+3}], v[{dst+4*w+2}:{dst+4*w+3}]")
    def row_reduce2(a, b):
        for n in (8, 4, 2, 1):
            A(f"v_add_f32_dpp v{a}, v{a}, v{a} row_ror:{n} row_mask:0xf bank_mask:0xf")
            A(f"v_add_f32_dpp v{b}, v{b}, v{b} row_ror:{n} row_mask:0xf bank_mask:0xf")
    def stats_finish():
        A(f"v_mul_f32 v48, {f2u(-1/576):#x}, v48\nv_mul_f32 v49, {f2u(1/576):#x}, v49")
        A("v_fma_f32 v49, -v48, v48, v49")
        A(f"v_add_f32 v49, {f2u(1e-5):#x}, v49\nv_rsq_f32 v49, v49")
    def ln_fix(cs):
        A(f"v_pk_fma_f32 v[8:9], v[{cs}:{cs+1}], v[48:49], v[8:9] op_sel_hi:[1,0,1]\nv_pk_fma_f32 v[10:11], v[{cs+2}:{cs+3}], v[48:49], v[10:11] op_sel_hi:[1,0,1]")
    def k_loads(ts):
        for t in ts:
            for s in range(4):
                A(f"buffer_load_dwordx4 v[{KR+16*t+4*s}:{KR+16*t+4*s+3}], v50, s[20:23], s{60+t} offen offset:{(1024 if P.get('sonly', 0) & 8 else 64)*s}{KNT}", tag=f"K{t}")
    def v_loads(ts):
        for t in ts:
            for r in range(4):
                A(f"buffer_load_dwordx4 v[{VR+16*t+4*r}:{VR+16*t+4*r+3}], v51, s[24:27], s{60+t} offen offset:{1024*r}{KNT}", tag=f"V{t}{r}")

    sonly = P.get("sonly", 0)
    if sonly & 8: A("v_mov_b32 v50, v51")
    if sonly & 32: A("v_lshlrev_b32 v50, 8, v1\nv_lshl_add_u32 v50, v2, 4, v50")
    if sonly & 16:
        A("s_lshl_b32 s68, s64, 25\ns_lshl_b32 s69, s4, 22\ns_add_u32 s68, s68, s69\ns_lshl_b32 s69, s65, 21\ns_add_u32 s68, s68, s69")
        A(f"s_lshl_b32 s69, s66, 17\ns_add_u32 s68, s68, s69\ns_add_u32 s68, s68, {6144*256}")
        A("s_add_u32 s20, s34, s68\ns_addc_u32 s21, s35, 0\ns_mov_b32 s22, 0x20000\ns_mov_b32 s23, 0x20000")
        A("s_add_u32 s24, s36, s68\ns_addc_u32 s25, s37, 0\ns_mov_b32 s26, 0x20000\ns_mov_b32 s27, 0x20000")
        def seq(o):
            if o == "F":
                for t in range(4):
                    for q in range(4):
                        A(f"buffer_load_dwordx4 v[{KR+16*t+4*q}:{KR+16*t+4*q+3}], v50, s[20:23], s{60+t} offen offset:{64*q} nt")
                        A(f"buffer_load_dwordx4 v[{VR+16*t+4*q}:{VR+16*t+4*q+3}], v51, s[24:27], s{60+t} offen offset:{1024*q} nt")
                return
            for x in o.split(): (k_loads if x[0] == "K" else v_loads)([int(x[1])])
        o1 = P.get("order", "K0 K1 K2 K3 V0 V1 V2 V3"); o2 = P.get("order2")
        if o2:
            with Cond("o1", P["o2test"].replace("lt", "ge").replace("eq", "lg")): seq(o1)
            with Cond("o2", P["o2test"]): seq(o2)
        else: seq(o1)
        A("s_waitcnt vmcnt(0)"); stamp(13, "all arrived"); A("s_branch L_trace")
    with wlt(0 if sonly & 2 else 5):
        A(f"s_mul_i32 s68, s66, {144*8192}\ns_lshl_b32 s69, s4, 10\ns_add_u32 s68, s68, s69\ns_lshl_b32 s69, s73, 7\ns_add_u32 s68, s68, s69")
        srd_tmp(38, "s68", 4718592)
        w_lane(8192, 32)
        A("s_cmp_eq_u32 s3, 4\ns_cselect_b32 exec_hi, 0, -1")
        w_step(24, 8192, 0, "wq")
        srd_x0()
        A("s_mul_i32 s15, s66, 288\ns_lshl_b32 s68, s3, 6\ns_add_u32 s15, s15, s68")
        A("buffer_load_dwordx4 v[8:11], v46, s[28:31], s15 offen", tag="x0f")
        fullexec()
    A("buffer_load_dword v55, off, s[16:19], 0 sc1", tag="E")
    with weq(6):
        srd_x0()
        A("v_mul_u32_u24 v44, 1152, v2\nv_lshl_add_u32 v44, v1, 4, v44")
        for u in range(4):
            A(f"buffer_load_dwordx4 v[{8+4*u}:{11+4*u}], v44, s[28:31], 0 offen offset:{256*u}", tag="x0s")
        setexec(0x00ff00ff, 0x00ff00ff)
        A("buffer_load_dwordx4 v[24:27], v44, s[28:31], 0 offen offset:1024", tag="x0s")
        fullexec()
    with weq(7):
        A("v_mov_b32 v4, -1\nv_mov_b32 v5, -1\nv_mov_b32 v6, -1\nv_mov_b32 v7, -1")
        A("s_lshl_b32 s68, s5, 11\ns_add_u32 s68, s68, s14")
        A("buffer_store_dwordx4 v[4:7], v51, s[16:19], s68 offen sc1", tag="rst")
        A("buffer_store_dwordx4 v[4:7], v51, s[16:19], s68 offen offset:1024 sc1", tag="rst")
    A("s_lshl_b32 s68, s64, 25\ns_lshl_b32 s69, s4, 22\ns_add_u32 s68, s68, s69\ns_lshl_b32 s69, s65, 21\ns_add_u32 s68, s68, s69")
    A(f"s_lshl_b32 s69, s66, 17\ns_add_u32 s68, s68, s69\ns_add_u32 s68, s68, {6144*256}")
    A("s_add_u32 s20, s34, s68\ns_addc_u32 s21, s35, 0\ns_mov_b32 s22, 0x20000\ns_mov_b32 s23, 0x20000")
    A("s_add_u32 s24, s36, s68\ns_addc_u32 s25, s37, 0\ns_mov_b32 s26, 0x20000\ns_mov_b32 s27, 0x20000")
    if flow:
        with weq(5):
            A(f"v_mov_b32 v4, 0\nv_mov_b32 v5, 0\nds_write_b64 v4, v[4:5] offset:{L_CNT}\ns_waitcnt lgkmcnt(0)")
    prio = P.get("prio", 1)
    if prio:
        with wne(5): A("s_setprio 3")
    if P.get("bar0", 1): A("s_barrier")
    seq1, seq2 = [x.split() for x in P.get("seq", "K0 | V0 K1 V1 W K2 K3 V2 Q V3").split("|")]
    lastK = [x for x in seq1 + seq2 if x[0] == "K"][-1]
    for x in seq1: (k_loads if x[0] == "K" else v_loads)([int(x[1])])
    def getT():
        A.wait_vm("E")
        A("v_readfirstlane_b32 s7, v55")
        A("s_nop 0\ns_add_u32 s7, s7, 1\ns_and_b32 s6, s7, 0xff\nv_mov_b32 v55, 0xffffff00")
    with wlt(0 if sonly & 2 else 5):
        A.wait_vm("x0f")
        stamp(5, "wq arrived")
        w_perm(WQF, 24)
        mma4(24, 8, WQF, True)
        mma4(SL, 12, WQF, True)
        A(f"v_add_u32 v47, {L_CS}, v45\nv_add_u32 v45, {L_T}, v45")
        tile_wr(24, 45); tile_wr(SL, 47)
        A("s_waitcnt lgkmcnt(0)")
        if flow:
            A(f"v_mov_b32 v4, 0\nv_mov_b32 v5, 1\ns_mov_b64 exec, 1\nds_add_u32 v4, v5 offset:{L_CNT}")
            fullexec()
    with weq(6):
        A.wait_vm("x0s")
        A("v_mov_b32 v28, 0x3f803f80\nv_mov_b32 v48, 0\nv_mov_b32 v49, 0")
        for k in range(8, 28):
            A(f"v_dot2_f32_bf16 v48, v{k}, v28, v48")
        for k in range(8, 28):
            A(f"v_dot2_f32_bf16 v49, v{k}, v{k}, v49")
        row_reduce2(48, 49)
        stats_finish()
        A(f"v_mul_f32 v49, {f2u(QSCALE):#x}, v49")
    if not flow: getT()
    def q_addr(L):
        A(f"v_lshlrev_b32 v44, 11, v2\nv_lshl_add_u32 v44, v1, 4, v44")
        A(f"s_lshl_b32 s70, s4, 15\ns_lshl_b32 s71, s66, 13\ns_add_u32 s70, s70, s71\ns_lshl_b32 s71, s73, 8\ns_add_u32 s70, s70, s71\ns_add_u32 s70, s70, {QA[L]}")
    def q_out():
        A("v_pk_mul_f32 v[8:9], v[8:9], v[48:49] op_sel:[0,1] op_sel_hi:[1,1]\nv_pk_mul_f32 v[10:11], v[10:11], v[48:49] op_sel:[0,1] op_sel_hi:[1,1]")
        A("v_and_or_b32 v8, v8, v55, s6")
    with weq(7):
        if flow: getT()
        A("v_mov_b32 v4, s7\nv_mov_b32 v5, s67")
        A(f"s_lshl_b32 s68, s4, 5\ns_add_u32 s68, s68, s5\ns_lshl_b32 s68, s68, 7\ns_add_u32 s68, s68, {FLAGS}")
        if not flow: A("s_barrier")
        A.wait_vm("rst")
        A("s_mov_b64 exec, 1")
        A("buffer_store_dwordx2 v[4:5], off, s[16:19], s68 sc1")
        fullexec()
    def lds_wait(off, val, ra, rd, slp=1):
        lp = A.L("Lcnt"); ld = A.L("Lcntd")
        A(f"v_mov_b32 v{ra}, 0")
        A.label(lp)
        A(f"ds_read_b32 v{rd}, v{ra} offset:{off}\ns_waitcnt lgkmcnt(0)\nv_readfirstlane_b32 s15, v{rd}")
        A(f"s_nop 0\ns_cmp_eq_u32 s15, {val}\ns_cbranch_scc1 {ld}")
        A(f"s_sleep {slp}\ns_sub_u32 s8, s8, 1\ns_cbranch_scc0 {lp}\ns_mov_b32 s8, 0")
        A.label(ld)
    qflag = P.get("qflag", 1)
    def q0_final():
        tile_sum(5, L_T, 51, 8); tile_sum(5, L_CS, 51, 56)
        tile_add(5, 8, after=5); tile_add(5, 56)
        ln_fix(56)
        q_out()
        A("buffer_store_dwordx4 v[8:11], v44, s[16:19], s70 offen sc1")
        stamp(4, "q0 stored")
    if flow:
        with weq(99 if sonly & 2 else 6):
            getT(); q_addr(0)
            lds_wait(L_CNT, 5, 4, 5)
            q0_final()
    else:
        with wne(7):
            with weq(6):
                q_addr(0)
            A("s_barrier")
            with weq(6):
                q0_final()
        A("s_barrier")
    if prio: A("s_setprio 0")
    with isW1():
        with weq(6):
            A("s_mul_i32 s68, s4, 1152\ns_lshl_b32 s69, s12, 7\ns_add_u32 s68, s68, s69")
            srd_tmp(46, "s68", 9216)
            A("v_lshlrev_b32 v44, 3, v1")
            A(f"buffer_load_dwordx2 v[88:89], v44, s[28:31], 0 offen", tag="b1")
    with isR():
        A("v_and_b32 v44, 7, v0\nv_lshlrev_b32 v44, 3, v44\nv_lshrrev_b32 v45, 5, v0\nv_lshl_add_u32 v44, v45, 2, v44")
        A("s_lshl_b32 s68, s13, 6")
        srd_tmp(50, "s68", 1152)
        A(f"buffer_load_dword v{SL+1}, v44, s[28:31], 0 offen", tag="b2")
        A(f"v_bfe_u32 v45, v0, 3, 2\nv_mul_u32_u24 v45, 1152, v45\nv_add3_u32 v{SL+2}, v44, v45, s68")
        srd_x0()
        A(f"buffer_load_dword v{SL}, v{SL+2}, s[28:31], 0 offen", tag="xres")
    def wo_loads():
        with cls(1):
            A(f"s_lshl_b32 s15, s4, 1\ns_add_u32 s15, s15, s11\ns_mul_i32 s15, s15, {256*1152}\ns_lshl_b32 s28, s10, 7\ns_add_u32 s15, s15, s28")
            srd_tmp(40, "s15", 4718592)
            w_lane(1152, 32)
            w_step(SL + 8, 1152, 0, "wo")
    def w1_loads(steps):
        A("s_mul_i32 s15, s4, 1152\ns_lshl_b32 s28, s12, 7\ns_add_u32 s15, s15, s28")
        srd_tmp(44, "s15", 5308416)
        w_lane(9216, 96)
        for s in steps: w_step(SL + 8 + 16 * s, 9216, 32 * s, "w1")
    def w_early():
        if sonly & 4: return
        wo_loads()
        if w1early:
            with cls(2): w1_loads(range(w1early))
    def q_loads(L):
        return [f"buffer_load_dwordx4 v[{8+4*k}:{11+4*k}], v{47}, s[16:19], s{68+k} offen sc1" for k in range(4)]
    def q_laddr(L):
        A(f"s_lshl_b32 s68, s4, 15\ns_lshl_b32 s69, s64, 11\ns_add_u32 s68, s68, s69\ns_lshl_b32 s69, s65, 10\ns_add_u32 s68, s68, s69\ns_add_u32 s68, s68, {QA[L]}")
        A("s_add_u32 s69, s68, 8192\ns_add_u32 s70, s68, 16384\ns_add_u32 s71, s68, 24576\nv_lshlrev_b32 v47, 4, v0")
    def q_finish():
        A("v_pk_add_f32 v[8:9], v[8:9], v[12:13]\nv_pk_add_f32 v[10:11], v[10:11], v[14:15]")
        A("v_pk_add_f32 v[16:17], v[16:17], v[20:21]\nv_pk_add_f32 v[18:19], v[18:19], v[22:23]")
        A("v_pk_add_f32 v[8:9], v[8:9], v[16:17]\nv_pk_add_f32 v[10:11], v[10:11], v[18:19]")
        A("v_cvt_pk_bf16_f32 v8, v8, v9\nv_cvt_pk_bf16_f32 v9, v10, v11\nv_lshlrev_b32 v10, 3, v0")
        A(f"ds_write_b64 v10, v[8:9] offset:{L_Q}\ns_waitcnt lgkmcnt(0)")
    def q_early():
        with weq(0):
            q_laddr(0)
            for t in q_loads(0): A(t, tag="q0")
        with weq(7):
            A("v_and_b32 v8, 31, v0\ns_lshl_b32 s68, s4, 5\nv_add_u32 v8, s68, v8")
            A(f"v_lshlrev_b32 v6, 7, v8\ns_mov_b32 s71, {FLAGS}")
            A("buffer_load_dwordx2 v[4:5], v6, s[16:19], s71 offen sc1", tag="fl")
    for x in seq2:
        if x == "W": w_early()
        elif x == "Q": q_early()
        else: (k_loads if x[0] == "K" else v_loads)([int(x[1])])
    def w2_loads():
        A(f"s_lshl_b32 s15, s4, 1\ns_add_u32 s15, s15, s11\ns_mul_i32 s15, s15, {288*1152}\ns_lshl_b32 s28, s10, 7\ns_add_u32 s15, s15, s28")
        srd_tmp(48, "s15", 5308416)
        w_lane(1152, 32, 43)
        w_step(SL + 24, 1152, 0, "w2", va=43)
        with weq(7):
            w_step(SL + 40, 1152, 32, "w2b", va=43)
    stamp(1, "loads issued")
    if sonly:
        A("s_waitcnt vmcnt(0)"); stamp(13, "all arrived"); A("s_branch L_trace")
    if flow:
        with wlt(6): getT()
    with weq(0):
        A.wait_vm("q0")
        lp = A.L("Lq0"); ld = A.L("Lq0d")
        A.label(lp)
        chk_tag([8, 12, 16, 20], 4)
        A(f"s_cbranch_vccz {ld}")
        A(f"s_sub_u32 s8, s8, 1\ns_cbranch_scc1 {ld}x")
        A.push_cond("never")
        for t in q_loads(0): A(t)
        A.pop_cond()
        A(f"s_waitcnt vmcnt(0)\ns_branch {lp}")
        A.label(ld + "x")
        A("s_mov_b32 s8, 0")
        A.label(ld)
        q_finish()
        if qflag: A(f"v_mov_b32 v10, 0\nv_mov_b32 v11, 1\nds_write_b32 v10, v11 offset:{L_CNT+4}")

    def lse_gate(L):
        A(f"v_lshlrev_b32 v46, 2, v0\ns_add_u32 s15, s14, {LSE_OFF[L]}")
        poll(["buffer_load_dword v47, v46, s[16:19], s15 offen sc1"], [47, 47], 45)
    def att(L):
        if L == 1:
            with isR(): A("s_waitcnt vmcnt(0)")
        for k in range(44, 52): A(f"v_mov_b32 v{k}, 0")
        A(f"v_bfe_u32 v54, v0, 1, 1\nv_lshlrev_b32 v54, 8, v54\nv_lshl_add_u32 v54, v2, 4, v54")
        if L == 0 and qflag: lds_wait(L_CNT + 4, 1, 52, 53, 4)
        else: A("s_barrier")
        stamp(2 + L, "att start")
        for s in range(4):
            A(f"ds_read_b128 v[{8+4*s}:{11+4*s}], v54 offset:{L_Q+64*s}")
        def sel(t, r):
            A(f"v_mov_b32_dpp v{24+r}, v{24+4*t+r} quad_perm:[0,1,2,3] row_mask:0xf bank_mask:{1<<t:#x}")
        if L == 0: curw = [A.wait_vm(lastK)]
        for t in range(4):
            for s in range(4):
                if t == 0: A(f"s_waitcnt lgkmcnt({3-s})")
                d = 24 + 4 * t
                A(f"v_mfma_f32_16x16x32_bf16 v[{d}:{d+3}], v[{KR+16*t+4*s}:{KR+16*t+4*s+3}], v[{8+4*s}:{11+4*s}], " + ("0" if s == 0 else f"v[{d}:{d+3}]"))
                if t == 3 and s < 2:
                    sel(1, 2 * s); sel(1, 2 * s + 1)
                if t == 3 and s >= 2:
                    sel(2, 2 * (s - 2)); sel(2, 2 * (s - 2) + 1)
        for r in range(4): sel(3, r)
        A("v_max3_f32 v52, v24, v25, v26\nv_max_f32 v52, v52, v27")
        A("v_max_f32_dpp v52, v52, v52 row_ror:4 row_mask:0xf bank_mask:0xf")
        A("v_max_f32_dpp v52, v52, v52 row_ror:8 row_mask:0xf bank_mask:0xf")
        A("v_mov_b32 v54, v52\nv_permlane16_swap_b32 v54, v52\nv_max_f32 v52, v52, v54")
        A("v_mov_b32 v54, v52\nv_permlane32_swap_b32 v54, v52\nv_max_f32 v52, v52, v54")
        for r in range(4): A(f"v_sub_f32 v{24+r}, v{24+r}, v52")
        for r in range(4): A(f"v_exp_f32 v{24+r}, v{24+r}")
        for r in range(4): A(f"v_cvt_pk_bf16_f32 v{28+r}, v{24+r}, v{24+r}")
        if L == 0 and not (sonly & 4):
            with cls(1): A.wait_vm("wo"); w_perm(SL, SL + 8)
        def abuild(k):
            t, r = divmod(k, 4); buf = 44 + 4 * (k & 1)
            for a in range(4):
                n = 4 * ((a - t) & 3)
                mod = f"row_ror:{n}" if n else "quad_perm:[0,1,2,3]"
                A(f"v_and_b32_dpp v{buf+a}, v{28+r}, v3 {mod} row_mask:0xf bank_mask:{1<<a:#x}")
        def pv():
            extra = ["v_add_f32 v53, v24, v25", "v_add_f32 v54, v26, v27", "v_add_f32 v53, v53, v54",
                     "v_add_f32_dpp v53, v53, v53 row_ror:4 row_mask:0xf bank_mask:0xf",
                     "v_add_f32_dpp v53, v53, v53 row_ror:8 row_mask:0xf bank_mask:0xf",
                     "v_mov_b32 v54, v53", "v_permlane16_swap_b32 v54, v53", "v_add_f32 v53, v53, v54",
                     "v_mov_b32 v54, v53", "v_permlane32_swap_b32 v54, v53", "v_add_f32 v53, v53, v54",
                     f"v_lshlrev_b32 v8, 4, v0", "s_lshl_b32 s15, s3, 10", "v_add_u32 v8, s15, v8",
                     "v_lshlrev_b32 v9, 5, v0", "s_lshl_b32 s15, s3, 3", "v_add_u32 v9, s15, v9"]
            abuild(0); abuild(1)
            for k in range(16):
                t, r = divmod(k, 4); buf = 44 + 4 * (k & 1)
                if L == 0 and A.vm_after(f"V{t}{r}") < curw[0]: curw[0] = A.wait_vm(f"V{t}{r}")
                A(f"v_mfma_f32_16x16x32_bf16 v[40:43], v[{buf}:{buf+3}], v[{VR+16*t+4*r}:{VR+16*t+4*r+3}], " + ("0" if k == 0 else "v[40:43]"))
                if k + 2 < 16: abuild(k + 2)
                for _ in range(2 if k >= 12 else 1):
                    if extra: A(extra.pop(0))
            while extra: A(extra.pop(0))
        pv()
        if L == 0: stamp(13, "pv done")
        A("s_mov_b64 exec, 5")
        A(f"ds_write_b64 v9, v[52:53] offset:{L_ST}")
        fullexec()
        A(f"ds_write_b128 v8, v[40:43] offset:{L_O}")
        if L == 0:
            with weq(7):
                lp = A.L("Lfl"); ld = A.L("Lfld")
                A.wait_vm("fl")
                A.label(lp)
                A("v_cmp_ne_u32 vcc, s7, v4")
                A(f"s_cbranch_vccz {ld}")
                A(f"s_sub_u32 s8, s8, 1\ns_cbranch_scc1 {ld}x")
                A.push_cond("never")
                A("buffer_load_dwordx2 v[4:5], v6, s[16:19], s71 offen sc1")
                A.pop_cond()
                A(f"s_waitcnt vmcnt(0)\ns_branch {lp}")
                A.label(ld + "x")
                A("s_mov_b32 s8, 0")
                A.label(ld)
                A("v_cmp_ne_u32 vcc, s67, v5")
                A("s_nop 3\nv_mov_b32 v4, vcc_lo\nv_mov_b32 v5, 0")
                if P.get("force_slow"): A("v_mov_b32 v4, 1")
                A(f"ds_write_b32 v5, v4 offset:{L_MODE}")
        A("s_waitcnt lgkmcnt(0)")
        A(f"v_lshlrev_b32 v46, 4, v0\ns_lshl_b32 s15, s3, 3\nv_add_u32 v46, s15, v46")
        A(f"v_and_b32 v47, 7, v0\nv_lshlrev_b32 v47, 3, v47\ns_lshl_b32 s15, s3, 6\nv_add_u32 v47, s15, v47")
        A("s_barrier")
        if L == 0:
            A(f"v_mov_b32 v5, 0\nds_read_b32 v4, v5 offset:{L_MODE}")
        with wlt(2):
            A(f"ds_read_b64 v[52:53], v47 offset:{L_ST}")
            for w in range(8):
                A(f"ds_read_b64 v[{8+2*w}:{9+2*w}], v46 offset:{L_O+1024*w}")
            A("s_lshl_b32 s68, s65, 1\ns_add_u32 s68, s68, s3")
            A(f"s_lshl_b32 s69, s68, 12\ns_lshl_b32 s70, s64, 8\ns_add_u32 s69, s69, s70\ns_lshl_b32 s70, s66, 6\ns_add_u32 s69, s69, s70\ns_add_u32 s69, s69, s14\ns_add_u32 s69, s69, {O_OFF[L]}")
            A(f"s_lshl_b32 s70, s68, 6\ns_lshl_b32 s71, s64, 4\ns_add_u32 s70, s70, s71\ns_lshl_b32 s71, s66, 2\ns_add_u32 s70, s70, s71\ns_add_u32 s70, s70, s14\ns_add_u32 s70, s70, {LSE_OFF[L]}")
            A("v_lshrrev_b32 v44, 2, v1\nv_lshlrev_b32 v44, 10, v44\nv_and_b32 v45, 3, v0\nv_lshl_add_u32 v44, v45, 4, v44\nv_lshl_add_u32 v44, v2, 2, v44")
            A("s_waitcnt lgkmcnt(8)")
            A("v_max_f32_dpp v54, v52, v52 quad_perm:[1,0,3,2] row_mask:0xf bank_mask:0xf")
            A("v_max_f32_dpp v54, v54, v54 quad_perm:[2,3,0,1] row_mask:0xf bank_mask:0xf")
            A("v_max_f32_dpp v54, v54, v54 row_half_mirror row_mask:0xf bank_mask:0xf")
            A("v_sub_f32 v52, v52, v54\nv_exp_f32 v52, v52\nv_mul_f32 v53, v53, v52")
            A("v_add_f32_dpp v53, v53, v53 quad_perm:[1,0,3,2] row_mask:0xf bank_mask:0xf")
            A("v_add_f32_dpp v53, v53, v53 quad_perm:[2,3,0,1] row_mask:0xf bank_mask:0xf")
            A("v_add_f32_dpp v53, v53, v53 row_half_mirror row_mask:0xf bank_mask:0xf")
            A("v_rcp_f32 v45, v53\nv_log_f32 v53, v53\nv_mul_f32 v52, v52, v45")
            for w in range(8): A(f"v_readlane_b32 s{20+w}, v52, {w}")
            A("v_add_f32 v53, v53, v54")
            A("s_waitcnt lgkmcnt(0)")
            if L == 0: A("v_readfirstlane_b32 s9, v4")
            A("v_mul_f32 v24, s20, v8\nv_mul_f32 v25, s20, v9")
            for w in range(1, 8):
                A(f"v_fmac_f32 v24, s{20+w}, v{8+2*w}\nv_fmac_f32 v25, s{20+w}, v{9+2*w}")
            A("v_cvt_pk_bf16_f32 v24, v24, v25")
            hstore("buffer_store_dword v24, v44, s[16:19], s69 offen")
            A("s_mov_b64 exec, 1")
            hstore("buffer_store_dword v53, off, s[16:19], s70")
            fullexec()
            stamp(4 + 2 * L, "O stored")
        if L == 0:
            A("s_waitcnt lgkmcnt(0)\nv_readfirstlane_b32 s9, v4")
            if w1early < 3:
                with isW1(): A("s_barrier")
            with cls(2):
                if w1early < 3:
                    if w1gate: lse_gate(0)
                    w1_loads(range(w1early, 3))
                A("s_waitcnt vmcnt(0)")
                for s in range(3): w_perm(SL + 16 * s, SL + 16 * s + 8)
                for k in range(12, 16): A(f"v_mov_b32 v{k}, 0x3f803f80")
                for s in range(3): mma4(24, 12, SL + 16 * s, s == 0)
                tile_addr(47); A(f"v_add_u32 v47, {L_CS}, v47")
                tile_wr(24, 47)

    def part_addr(slot):
        A("v_lshrrev_b32 v44, 3, v1\nv_lshlrev_b32 v44, 13, v44\nv_lshl_add_u32 v44, v2, 7, v44\nv_and_b32 v43, 7, v1\nv_lshl_add_u32 v44, v43, 4, v44")
        A(f"s_lshl_b32 s68, s10, 14\ns_lshl_b32 s69, s4, 10\ns_add_u32 s68, s68, s69\ns_lshl_b32 s69, s11, 9\ns_add_u32 s68, s68, s69\ns_add_u32 s68, s68, {AREA_A + slot*SLOT_SZ}")
    def part_final(st):
        A("v_lshlrev_b32 v46, 4, v0")
        tile_sum(8, L_T, 46, 8); tile_add(8, 8)
        A("v_and_or_b32 v8, v8, v55, s6")
        A(f"buffer_store_dwordx4 v[8:11], v44, s[16:19], s68 offen {P.get('pst', 'sc1')}")
        stamp(st, "partial stored")

    def wo_stage(L):
        with isWO():
            A("s_lshr_b32 s68, s3, 2\ns_lshl_b32 s69, s11, 1\ns_add_u32 s68, s68, s69\ns_and_b32 s69, s3, 3")
            A(f"s_lshl_b32 s70, s68, 12\ns_lshl_b32 s69, s69, 10\ns_add_u32 s70, s70, s69\ns_add_u32 s70, s70, s14\ns_add_u32 s70, s70, {O_OFF[L]}")
            A(f"s_lshl_b32 s71, s68, 6\ns_add_u32 s71, s71, s14\ns_add_u32 s71, s71, {LSE_OFF[L]}")
            A("v_lshlrev_b32 v42, 6, v1\nv_lshl_add_u32 v42, v2, 4, v42\nv_lshlrev_b32 v45, 4, v2")
            tile_addr(46)
            part_addr(SLOT_PO[L])
            poll(["buffer_load_dwordx4 v[8:11], v42, s[16:19], s70 offen sc1",
                  "buffer_load_dwordx4 v[16:19], v45, s[16:19], s71 offen sc1"], [8, 9, 10, 11, 16, 17, 18, 19], 47)
            if trace:
                with wlt(6): stamp(8 + L, "wo poll done")
            mma4(24, 8, SL, True)
            A("v_max3_f32 v20, v16, v17, v18\nv_max_f32 v20, v20, v19")
            for r in range(4): A(f"v_sub_f32 v{16+r}, v{16+r}, v20")
            for r in range(4): A(f"v_exp_f32 v{16+r}, v{16+r}")
            A("v_add_f32 v20, v16, v17\nv_add_f32 v21, v18, v19\nv_add_f32 v20, v20, v21\nv_rcp_f32 v20, v20")
            A("v_pk_mul_f32 v[16:17], v[16:17], v[20:21] op_sel_hi:[1,0]\nv_pk_mul_f32 v[18:19], v[18:19], v[20:21] op_sel_hi:[1,0]")
            if L == 0 and w2pos == 0: w2_loads()
            for c in range(4):
                A(f"v_pk_mul_f32 v[{24+4*c}:{25+4*c}], v[{24+4*c}:{25+4*c}], v[16:17]")
            for c in range(4):
                A(f"v_pk_fma_f32 v[{24+4*c}:{25+4*c}], v[{26+4*c}:{27+4*c}], v[18:19], v[{24+4*c}:{25+4*c}]")
            for c in range(4):
                A(f"v_add_f32 v{12+c}, v{24+4*c}, v{25+4*c}")
            A(f"ds_write_b128 v46, v[12:15] offset:{L_T}")
            A("s_waitcnt lgkmcnt(0)\ns_barrier")
            with weq(0):
                part_final(5 + 2 * L)
            if L == 0:
                if w2pos == 2: A("s_barrier")
                if w2pos >= 1: w2_loads()
                A("s_waitcnt vmcnt(0)")
                w_perm(SL + 16, SL + 24)
                with weq(7): w_perm(SL + 32, SL + 40)

    rpipe = P.get("rpipe", 0); RB = 96; C = 56
    def r_stage(L, kind):
        final = (L == 1 and kind == 1)
        slot = (SLOT_PO if kind == 0 else SLOT_P2)[L]
        def issue(X):
            for u in range(8):
                A(f"buffer_load_dwordx4 v[{X+4*u}:{X+3+4*u}], v44, s[16:19], s{68 if u < 4 else 71} offen offset:{1024*(u&3)} {P.get('pld', 'sc1')}")
        def lvl1(X):
            for j in range(4):
                A(f"v_pk_add_f32 v[{C+4*j}:{C+4*j+1}], v[{X+8*j}:{X+8*j+1}], v[{X+8*j+4}:{X+8*j+5}]\nv_pk_add_f32 v[{C+4*j+2}:{C+4*j+3}], v[{X+8*j+2}:{X+8*j+3}], v[{X+8*j+6}:{X+8*j+7}]")
        def body():
            A(f"s_lshl_b32 s68, s13, 13\ns_add_u32 s68, s68, {AREA_A + slot*SLOT_SZ}\ns_add_u32 s71, s68, 4096")
            A("v_lshlrev_b32 v44, 4, v0")
            if not final:
                xo = X1_OFF[L] if kind == 0 else X2_OFF
                so = XS1_OFF[L] if kind == 0 else XS2_OFF
                A(f"s_add_u32 s69, s14, {xo}\ns_lshl_b32 s70, s13, 3\ns_add_u32 s70, s70, s14\ns_add_u32 s70, s70, {so}")
                A("v_lshlrev_b32 v45, 5, v0")
            else:
                A("s_mov_b32 s28, s52\ns_mov_b32 s29, s53\ns_mov_b32 s30, 4608\ns_mov_b32 s31, 0x20000")
            A(f"v_lshlrev_b32 v40, 16, v{SL}\nv_and_b32 v41, 0xffff0000, v{SL}")
            if kind == 1:
                A(f"v_lshlrev_b32 v42, 16, v{SL+1}\nv_and_b32 v43, 0xffff0000, v{SL+1}")
            if rgate:
                if kind == 0:
                    A(f"v_lshlrev_b32 v6, 2, v0\ns_add_u32 s15, s14, {LSE_OFF[L]}")
                else:
                    A(f"v_lshlrev_b32 v6, 7, v0\ns_add_u32 s15, s14, {H_OFF[L]}\ns_mov_b64 exec, 0x1ff")
                poll(["buffer_load_dword v4, v6, s[16:19], s15 offen sc1"], [4, 4], 5)
                if kind == 1: fullexec()
                d = rdel[2 * L + kind]
                if d: A(f"s_sleep {d}")
            if rpipe:
                lp = A.L("Lrp"); la = A.L("Lra"); lb = A.L("Lrb"); lc = A.L("Lrc")
                issue(8)
                if rint: A(f"s_sleep {rint}")
                issue(RB)
                A.label(lp)
                A("s_waitcnt vmcnt(8)"); chk_tag(range(8, 40, 4), 46); A(f"s_cbranch_vccz {la}")
                issue(8)
                A("s_waitcnt vmcnt(8)"); chk_tag(range(RB, RB + 32, 4), 46); A(f"s_cbranch_vccz {lb}")
                issue(RB)
                A(f"s_sub_u32 s8, s8, 1\ns_cbranch_scc0 {lp}\ns_mov_b32 s8, 0\ns_waitcnt vmcnt(0)")
                A.label(la)
                stamp(8 + 2 * L + kind, "R poll done")
                lvl1(8); A(f"s_branch {lc}")
                A.label(lb)
                stamp(8 + 2 * L + kind, "R poll done")
                lvl1(RB)
                A.label(lc)
            else:
                poll([f"buffer_load_dwordx4 v[{8+4*u}:{11+4*u}], v44, s[16:19], s{68 if u < 4 else 71} offen offset:{1024*(u&3)} {P.get('pld', 'sc1')}" for u in range(8)],
                     range(8, 40, 4), 46, tagged=True)
                stamp(8 + 2 * L + kind, "R poll done")
                lvl1(8)
            for st in (4, 8):
                for u in range(C, C + 16, 2 * st):
                    A(f"v_pk_add_f32 v[{u}:{u+1}], v[{u}:{u+1}], v[{u+st}:{u+st+1}]\nv_pk_add_f32 v[{u+2}:{u+3}], v[{u+2}:{u+3}], v[{u+st+2}:{u+st+3}]")
            c0, c1, c2, c3, c4, c5 = range(C, C + 6)
            A(f"v_permlane32_swap_b32 v{c0}, v{c2}\nv_permlane32_swap_b32 v{c1}, v{c3}")
            A(f"v_add_f32 v{c0}, v{c0}, v{c2}\nv_add_f32 v{c1}, v{c1}, v{c3}")
            A(f"v_cvt_pk_bf16_f32 v{c0}, v{c0}, v{c1}")
            A(f"v_and_b32 v{c1}, 0xffff0000, v{c0}\nv_lshlrev_b32 v{c0}, 16, v{c0}")
            if kind == 1:
                A(f"v_add_f32 v{c0}, v{c0}, v42\nv_add_f32 v{c1}, v{c1}, v43\nv_cvt_pk_bf16_f32 v{c0}, v{c0}, v{c1}")
                A(f"v_and_b32 v{c1}, 0xffff0000, v{c0}\nv_lshlrev_b32 v{c0}, 16, v{c0}")
            A(f"v_add_f32 v{c0}, v{c0}, v40\nv_add_f32 v{c1}, v{c1}, v41\nv_cvt_pk_bf16_f32 v{SL}, v{c0}, v{c1}")
            if final:
                A(f"buffer_store_dword v{SL}, v{SL+2}, s[28:31], 0 offen")
                with Cond("e", "s_cmp_eq_u32 s13, 0"):
                    A(f"v_mov_b32 v{c0}, s7\ns_mov_b64 exec, 1")
                    A(f"buffer_store_dword v{c0}, off, s[16:19], 0 sc1")
                    fullexec()
            else:
                hstore(f"buffer_store_dword v{SL}, v{SL+2}, s[16:19], s69 offen")
                A(f"v_lshlrev_b32 v{c0}, 16, v{SL}\nv_and_b32 v{c1}, 0xffff0000, v{SL}")
                A(f"v_add_f32 v{c2}, v{c0}, v{c1}\nv_mul_f32 v{c3}, v{c0}, v{c0}\nv_fmac_f32 v{c3}, v{c1}, v{c1}")
                for mod in ("quad_perm:[1,0,3,2]", "quad_perm:[2,3,0,1]", "row_half_mirror"):
                    A(f"v_add_f32_dpp v{c2}, v{c2}, v{c2} {mod} row_mask:0xf bank_mask:0xf")
                    A(f"v_add_f32_dpp v{c3}, v{c3}, v{c3} {mod} row_mask:0xf bank_mask:0xf")
                A(f"v_mov_b32 v{c4}, v{c2}\nv_mov_b32 v{c5}, v{c3}")
                A(f"v_permlane32_swap_b32 v{c4}, v{c2}\nv_permlane32_swap_b32 v{c5}, v{c3}")
                A(f"v_add_f32 v{c2}, v{c2}, v{c4}\nv_add_f32 v{c3}, v{c3}, v{c5}")
                setexec(0x01010101, 0)
                hstore(f"buffer_store_dwordx2 v[{c2}:{c3}], v45, s[16:19], s70 offen")
                fullexec()
            stamp(4 + 2 * L + kind, "R done")
        with isR():
            if final:
                A("s_and_b32 s68, s13, 7")
                with Cond("fin", "s_cmp_eq_u32 s68, s4"): body()
            else:
                body()

    def stats_poll(so):
        A(f"v_lshlrev_b32 v44, 8, v2\nv_lshl_add_u32 v44, v1, 4, v44\ns_add_u32 s68, s14, {so}")
        for k in range(8, 12): A(f"v_mov_b32 v{k}, 0")
        setexec(0x01ff01ff, 0x01ff01ff)
        poll(["buffer_load_dwordx4 v[8:11], v44, s[16:19], s68 offen sc1"], range(8, 12), 47)
        fullexec()
        A("v_add_f32 v48, v8, v10\nv_add_f32 v49, v9, v11")
        row_reduce2(48, 49)
        stats_finish()

    def w1_stage(L):
        with isW1():
            with wlt(6):
                tile_addr(45); xfrag_off(46)
                A(f"v_add_u32 v45, {L_T}, v45\ns_mul_i32 s15, s3, 192\ns_add_u32 s15, s15, s14\ns_add_u32 s15, s15, {X1_OFF[L]}")
                poll([f"buffer_load_dwordx4 v[{8+4*s}:{11+4*s}], v46, s[16:19], s15 offen offset:{64*s} sc1" for s in range(3)], range(8, 20), 47)
                if L == 0: stamp(10, "w1 polled")
                for s in range(3): mma4(24, 8 + 4 * s, SL + 16 * s, s == 0)
                tile_wr(24, 45)
                A("s_waitcnt lgkmcnt(0)\ns_barrier")
            with weq(7):
                A("s_barrier")
            with weq(6):
                A(f"v_mul_u32_u24 v45, 1152, v2\nv_lshl_add_u32 v45, v1, 3, v45\ns_lshl_b32 s69, s12, 7\ns_add_u32 s69, s69, s14\ns_add_u32 s69, s69, {H_OFF[L]}")
                if L == 0:
                    A("s_waitcnt vmcnt(0)")
                    A("v_and_b32 v91, 0xffff0000, v89\nv_lshlrev_b32 v90, 16, v89\nv_and_b32 v89, 0xffff0000, v88\nv_lshlrev_b32 v88, 16, v88")
                A(f"s_mov_b32 s70, {f2u(-2*LOG2E*math.sqrt(2/math.pi)*0.044715):#x}\nv_mov_b32 v50, {f2u(-2*LOG2E*math.sqrt(2/math.pi)):#x}\nv_mov_b32 v52, s70\nv_mov_b32 v53, 1.0")
                A("v_lshlrev_b32 v46, 4, v0")
                stats_poll(XS1_OFF[L])
                A("s_barrier")
                tile_sum(6, L_T, 46, 8)
                if L == 0:
                    tile_sum(6, L_CS, 46, 60)
                    tile_add(6, 8, after=6); tile_add(6, 60)
                else:
                    tile_add(6, 8)
                ln_fix(60)
                for h in (0, 2):
                    A(f"v_pk_fma_f32 v[{8+h}:{9+h}], v[{8+h}:{9+h}], v[48:49], v[{88+h}:{89+h}] op_sel:[0,1,0] op_sel_hi:[1,1,1]")
                for h in (0, 2): A(f"v_pk_mul_f32 v[{12+h}:{13+h}], v[{8+h}:{9+h}], v[{8+h}:{9+h}]")
                for h in (0, 2): A(f"v_pk_fma_f32 v[{12+h}:{13+h}], v[{12+h}:{13+h}], v[52:53], v[50:51] op_sel_hi:[1,0,0]")
                for h in (0, 2): A(f"v_pk_mul_f32 v[{12+h}:{13+h}], v[{12+h}:{13+h}], v[{8+h}:{9+h}]")
                for k in range(4): A(f"v_exp_f32 v{12+k}, v{12+k}")
                for h in (0, 2): A(f"v_pk_add_f32 v[{12+h}:{13+h}], v[{12+h}:{13+h}], v[52:53] op_sel:[0,1] op_sel_hi:[1,1]")
                for k in range(4): A(f"v_rcp_f32 v{12+k}, v{12+k}")
                for h in (0, 2): A(f"v_pk_mul_f32 v[{8+h}:{9+h}], v[{8+h}:{9+h}], v[{12+h}:{13+h}]")
                A("v_cvt_pk_bf16_f32 v8, v8, v9\nv_cvt_pk_bf16_f32 v9, v10, v11")
                hstore("buffer_store_dwordx2 v[8:9], v45, s[16:19], s69 offen")
                stamp(5 + 3 * L, "H stored")

    def w2_stage(L):
        with isWO():
            tile_addr(45); xfrag_off(46)
            A(f"v_add_u32 v45, {L_T}, v45\ns_mul_i32 s15, s11, 576\ns_lshl_b32 s70, s3, 6\ns_add_u32 s15, s15, s70\ns_add_u32 s15, s15, s14\ns_add_u32 s15, s15, {H_OFF[L]}")
            part_addr(SLOT_P2[L])
            with wne(7):
                poll(["buffer_load_dwordx4 v[8:11], v46, s[16:19], s15 offen sc1"], range(8, 12), 47)
                if L == 0: stamp(11, "w2 polled")
                mma4(24, 8, SL + 16, True)
            with weq(7):
                poll(["buffer_load_dwordx4 v[8:11], v46, s[16:19], s15 offen sc1", "buffer_load_dwordx4 v[12:15], v46, s[16:19], s15 offen offset:64 sc1"], range(8, 16), 47)
                mma4(24, 8, SL + 16, True)
                mma4(24, 12, SL + 32, False)
            tile_wr(24, 45)
            A("s_waitcnt lgkmcnt(0)\ns_barrier")
            with weq(0):
                part_final(10 + 2 * L)

    def wq_stage():
        with wlt(5):
            tile_addr(45); xfrag_off(46)
            A(f"v_add_u32 v45, {L_T}, v45\ns_mul_i32 s15, s66, 288\ns_lshl_b32 s70, s3, 6\ns_add_u32 s15, s15, s70\ns_add_u32 s15, s15, s14\ns_add_u32 s15, s15, {X2_OFF}")
            for k in range(8, 12): A(f"v_mov_b32 v{k}, 0")
            A("s_cmp_eq_u32 s3, 4\ns_cselect_b32 exec_hi, 0, -1")
            poll(["buffer_load_dwordx4 v[8:11], v46, s[16:19], s15 offen sc1"], range(8, 12), 47)
            fullexec()
            if trace:
                with wne(0): stamp(12, "wq polled")
            mma4(24, 8, WQF, True)
            tile_wr(24, 45)
            A("s_waitcnt lgkmcnt(0)")
        with wne(6):
            A("s_barrier")
        with weq(6):
            A("v_lshlrev_b32 v46, 4, v0")
            stats_poll(XS2_OFF)
            A(f"v_mul_f32 v49, {f2u(QSCALE):#x}, v49")
            q_addr(1)
            A("s_barrier")
            tile_sum(5, L_T, 46, 8); tile_add(5, 8)
            ln_fix(56)
            q_out()
            hstore("buffer_store_dwordx4 v[8:11], v44, s[16:19], s70 offen")
            stamp(7, "Q1 stored")

    def q1_fetch():
        with weq(0):
            q_laddr(1)
            poll(q_loads(1), [8, 12, 16, 20], 4, tagged=True)
            q_finish()

    stages = [lambda: att(0), lambda: wo_stage(0), lambda: r_stage(0, 0), lambda: w1_stage(0), lambda: w2_stage(0),
              lambda: r_stage(0, 1), wq_stage, q1_fetch,
              lambda: att(1), lambda: wo_stage(1), lambda: r_stage(1, 0), lambda: w1_stage(1), lambda: w2_stage(1), lambda: r_stage(1, 1)]
    names = ["att0", "wo0", "r00", "w10", "w20", "r01", "wq", "q1", "att1", "wo1", "r10", "w11", "w21", "r11"]
    for k, st in enumerate(stages):
        if k >= stop: break
        A.c(f"======== stage {names[k]} ========")
        st()
    if sonly: A.label("L_trace")
    if trace:
        A("s_waitcnt lgkmcnt(0)\nv_mov_b32 v8, 0")
        for k in range(14):
            A(f"v_writelane_b32 v8, s{74+2*k}, {k}")
        A(f"s_lshl_b32 s68, s2, 3\ns_add_u32 s68, s68, s3\ns_lshl_b32 s68, s68, 6\ns_add_u32 s68, s68, {TRACE}\nv_lshlrev_b32 v9, 2, v0")
        A("s_mov_b64 exec, 0xffff\nbuffer_store_dword v8, v9, s[16:19], s68 offen")
    A.label("L_end")
    A("s_endpgm")
    A.raw(f""".section .rodata,"a"
.p2align 6
.amdhsa_kernel {NAME}_kernel
  .amdhsa_next_free_vgpr 256
  .amdhsa_next_free_sgpr 102
  .amdhsa_accum_offset 256
  .amdhsa_group_segment_fixed_size 0
  .amdhsa_kernarg_size 104
  .amdhsa_user_sgpr_count 2
  .amdhsa_user_sgpr_kernarg_segment_ptr 1
  .amdhsa_system_sgpr_workgroup_id_x 1
.end_amdhsa_kernel""")
    return A

if __name__ == "__main__":
    import json
    P = json.loads(sys.argv[2]) if len(sys.argv) > 2 else {}
    A = gen(P)
    open(sys.argv[1], "w").write(A.text())
    print("instrs", len(A.ins), "nop states", A.nnops)
```

```python
import sys, math, struct
sys.path.insert(0, "gen")
from asmlib import Asm

NAME = "interleave_layers__sliding_block_cached__dense_activation_gelu__decode"
VER = 3
FLAGS = 0x1000; QA = [0x10000, 0x50000]; AREA_A = 0x90000; SLOT_SZ = 18 * 8192; AREA_B = 0x120000; TRACE = 0x1A0000; WS_SIZE = 0x1C0000
O_OFF = [0, 16384]; X1_OFF = [36864, 46080]; X2_OFF = 41472; H_OFF = [50688, 55296]
LSE_OFF = [32768, 34816]; LSE_REP = 1; XS1_OFF = [60416, 62464]; XS2_OFF = 61440
SLOT_PO = [0, 1]; SLOT_P2 = [2, 3]
L_Q = 0; L_ST = 512; L_MODE = 640; L_CNT = 648; L_O = 1024; L_T = 9216; L_CS = 17408; LDS_SIZE = 23552
WQF = 56; SL = 72
KR, VR = 128, 192
def f2u(f): return struct.unpack("<I", struct.pack("<f", f))[0]
LOG2E = 1.4426950408889634
QSCALE = (128 ** -0.5) * LOG2E

def gen(P):
    A = Asm()
    trace = P.get("trace", 0)
    stop = P.get("stop", 99)
    kearly = P.get("kearly", 2); qpos = P.get("qpos", 2); wpos = P.get("wpos", 2); w2pos = P.get("w2pos", 1)
    flow = P.get("flow", 1); w1early = P.get("w1early", 0); w1gate = P.get("w1gate", 0); rgate = P.get("rgate", 0)
    rdel = P.get("rdel", [0, 0, 0, 0]); rint = P.get("rint", 4)
    vt = P.get("vt", 1)
    FS = [72, 224, 240] if vt else [72, 88, 104]
    LS = [80, 232, 24] if vt else [80, 96, 112]
    VT = [96, 192]
    assert not (vt and w1early > 1)
    WNT = " nt" if P.get("wnt", 1) else ""
    KNT = P.get("knt", " nt")
    atr = P.get("atr", 0)
    def stamp(k, name="", a=0):
        if atr and k >= 8 and a != atr: return
        if a and not atr: return
        if k in P.get("nost", []): return
        if P.get("mt") and not (k == 0 or (k == 7 and name == "R done") or (k == 4 and name == "O stored") or [k, name] in P.get("mtx", [])): return
        if trace:
            A(f"s_memrealtime s[{74+2*k}:{75+2*k}]")
            A.c(f"stamp {k} {name}")
    class Cond:
        def __init__(s, name, test): s.name = name; s.test = test
        def __enter__(s):
            s.l = A.L("Lskip")
            A(s.test); A(f"s_cbranch_scc0 {s.l}"); A.push_cond(s.name)
        def __exit__(s, *a):
            A.pop_cond(); A.label(s.l)
    isWO = lambda: Cond("wo", "s_cmp_lt_u32 s5, 18")
    isW1 = lambda: Cond("w1", "s_cmp_lt_u32 s12, 9")
    isR = lambda: Cond("r", "s_cmp_lt_u32 s13, 18")
    cls = lambda k: Cond({0: "c0", 1: "wo", 2: "w1c"}[k], f"s_cmp_eq_u32 s72, {k}")
    wlt = lambda n: Cond(f"w<{n}", f"s_cmp_lt_u32 s3, {n}")
    weq = lambda n: Cond(f"w={n}", f"s_cmp_eq_u32 s3, {n}")
    wne = lambda n: Cond(f"w!{n}", f"s_cmp_lg_u32 s3, {n}")
    def setexec(lo, hi):
        A(f"s_mov_b32 exec_lo, {lo:#x}\ns_mov_b32 exec_hi, {hi:#x}")
    def fullexec(): A("s_mov_b64 exec, -1")
    deferred = []
    def hstore(text):
        l1 = A.L("Lsl"); l2 = A.L("Lsd")
        A(f"s_cmp_lg_u32 s9, 0\ns_cbranch_scc1 {l1}")
        A(text)
        A.label(l2)
        deferred.append((l1, l2, text))
    def flush_deferred():
        for l1, l2, text in deferred:
            A.label(l1)
            A.push_cond("never")
            for ln in text.split("\n"): A(ln + (" sc1" if ln.startswith("buffer_store") else ""))
            A.pop_cond()
            A(f"s_branch {l2}")
    def chk_sent(regs, tmp):
        rs = list(regs); first = True
        while rs:
            if first:
                if len(rs) >= 3: A(f"v_max3_u32 v{tmp}, v{rs[0]}, v{rs[1]}, v{rs[2]}"); rs = rs[3:]
                else: A(f"v_max_u32 v{tmp}, v{rs[0]}, v{rs[1]}"); rs = rs[2:]
                first = False
            elif len(rs) >= 2: A(f"v_max3_u32 v{tmp}, v{tmp}, v{rs[0]}, v{rs[1]}"); rs = rs[2:]
            else: A(f"v_max_u32 v{tmp}, v{tmp}, v{rs[0]}"); rs = rs[1:]
        A(f"v_cmp_eq_u32 vcc, -1, v{tmp}")
    def chk_tag(regs, tmp):
        rs = list(regs)
        for r in rs: A(f"v_xor_b32 v{r}, s6, v{r}")
        A(f"v_or3_b32 v{tmp}, v{rs[0]}, v{rs[1]}, v{rs[2]}"); rs = rs[3:]
        while rs:
            if len(rs) >= 2: A(f"v_or3_b32 v{tmp}, v{tmp}, v{rs[0]}, v{rs[1]}"); rs = rs[2:]
            else: A(f"v_or_b32 v{tmp}, v{tmp}, v{rs[0]}"); rs = rs[1:]
        A(f"v_and_b32 v{tmp}, 0xff, v{tmp}\nv_cmp_ne_u32 vcc, 0, v{tmp}")
    def poll(loads, regs, tmp, tagged=False, kind="x", keep=False):
        lp = A.L("Lpoll"); ld = A.L("Lpd")
        pm = kind in P.get("pmask", "")
        A.label(lp)
        for t in loads: A(t)
        A("s_waitcnt vmcnt(0)")
        (chk_tag if tagged else chk_sent)(regs, tmp)
        A(f"s_cbranch_vccz {ld}")
        if pm: A("s_mov_b64 exec, vcc")
        A(f"s_sub_u32 s8, s8, 1\ns_cbranch_scc0 {lp}\ns_mov_b32 s8, 0")
        A.label(ld)
        if pm and not keep: fullexec()

    hdr = open(f"cdna_kernels/{NAME}.s.ref").read().split("\n")
    for ln in hdr:
        if ln.startswith("; @launch"): break
        A.raw(ln)
    A.raw(f"; @launch grid=(256,1,1) block=(512,1,1) lds={LDS_SIZE}")
    A.raw('.amdgcn_target "amdgcn-amd-amdhsa--gfx950"')
    A.raw(f".text\n.globl {NAME}_kernel\n.p2align 8\n.type {NAME}_kernel,@function\n{NAME}_kernel:")
    A("s_cmp_ge_u32 s2, 256\ns_cbranch_scc1 L_end")
    A("s_load_dwordx2 s[56:57], s[0:1], 96\ns_load_dwordx16 s[32:47], s[0:1], 0\ns_load_dwordx8 s[48:55], s[0:1], 64")
    if trace:
        for k in range(1, 14): A(f"s_mov_b32 s{74+2*k}, 0")
    stamp(0, "start")
    A("v_lshrrev_b32 v1, 6, v0\nv_and_b32 v0, 63, v0\nv_readfirstlane_b32 s3, v1")
    A("v_and_b32 v1, 15, v0\nv_lshrrev_b32 v2, 4, v0")
    A("s_and_b32 s4, s2, 7\ns_lshr_b32 s5, s2, 3")
    A("s_mov_b32 s8, 150000\ns_mov_b32 s9, 1")
    A("s_cmp_ge_u32 s5, 9\ns_cselect_b32 s11, 1, 0\ns_mul_i32 s10, s11, 9\ns_sub_u32 s10, s5, s10")
    A("s_sub_u32 s12, s5, 18")
    A("s_mov_b32 s13, 99\ns_cmp_eq_u32 s3, 7\ns_cselect_b32 s13, s12, s13")
    A("s_sub_u32 s15, s5, 13\ns_cmp_ge_u32 s5, 27\ns_cselect_b32 s15, s15, 99\ns_cmp_eq_u32 s3, 5\ns_cselect_b32 s13, s15, s13")
    A("s_cmp_lt_u32 s3, 6\ns_cselect_b32 s72, 2, 0\ns_cmp_lt_u32 s12, 9\ns_cselect_b32 s72, s72, 0\ns_cmp_lt_u32 s5, 18\ns_cselect_b32 s72, 1, s72")
    A(f"s_lshl_b32 s14, s4, 16\ns_add_u32 s14, s14, {AREA_B}")
    A("s_mov_b32 s58, 0x05040100\ns_mov_b32 s59, 0x07060302")
    A("s_bfe_u32 s64, s5, 0x20001\ns_and_b32 s65, s5, 1\ns_lshr_b32 s66, s5, 3")
    A("s_getreg_b32 s67, hwreg(HW_REG_XCC_ID)\ns_and_b32 s67, s67, 15")
    A("v_and_b32 v4, 1, v0\nv_lshlrev_b32 v4, 4, v4\nv_mov_b32 v3, 0xffff\nv_lshlrev_b32 v3, v4, v3")
    A("s_and_b32 s73, s5, 7\ns_lshl_b32 s60, s3, 12")
    tmap = P.get("tmap", 0)
    if tmap == 0:
        for t in range(1, 4):
            A(f"s_add_u32 s{60+t}, s60, {t << 15}")
    elif tmap == 1:
        A("s_lshl_b32 s60, s3, 14")
        for t in range(1, 4): A(f"s_add_u32 s{60+t}, s60, {t << 12}")
    elif tmap == 2:
        A("s_lshl_b32 s60, s3, 13\ns_add_u32 s61, s60, 4096\ns_add_u32 s62, s60, 65536\ns_add_u32 s63, s60, 69632")
    elif tmap >= 3:
        a, b = P.get("rot", [1, 0])
        A(f"s_mul_i32 s15, s5, {a}\ns_mul_i32 s61, s4, {b}\ns_add_u32 s15, s15, s61\ns_add_u32 s15, s15, s3")
        for t in range(4): A(f"s_add_u32 s{60+t}, s15, {8*t}\ns_and_b32 s{60+t}, s{60+t}, 31\ns_lshl_b32 s{60+t}, s{60+t}, 12")
    A("s_and_b32 s31, s3, 1")
    A("v_and_b32 v50, 3, v1\nv_lshlrev_b32 v50, 10, v50\nv_lshrrev_b32 v51, 2, v1\nv_lshl_add_u32 v50, v51, 8, v50\nv_lshl_add_u32 v50, v2, 4, v50\nv_lshlrev_b32 v51, 4, v0")
    def tile_addr(r=45): A(f"s_lshl_b32 s15, s3, 10\nv_lshl_add_u32 v{r}, v0, 4, s15")
    def xfrag_off(r=46): A(f"v_lshrrev_b32 v{r}, 2, v1\nv_mul_u32_u24 v{r}, 1152, v{r}\nv_lshl_add_u32 v{r}, v2, 4, v{r}")
    for k in [6, 44, 47, SL + 2] + list(range(8, 12)) + list(range(24, 40)): A(f"v_mov_b32 v{k}, 0")
    for k in range(12, 16): A(f"v_mov_b32 v{k}, 0x3f803f80")
    tile_addr(); xfrag_off()
    A("s_waitcnt lgkmcnt(0)")
    A(f"s_mov_b32 s16, s56\ns_mov_b32 s17, s57\ns_mov_b32 s18, {WS_SIZE}\ns_mov_b32 s19, 0x20000")

    def srd_tmp(ptr, offs, total):
        A(f"s_add_u32 s28, s{ptr}, {offs}\ns_addc_u32 s29, s{ptr+1}, 0\ns_sub_u32 s30, {total}, {offs}\ns_mov_b32 s31, 0x20000")
    def srd_x0(): A("s_mov_b32 s28, s32\ns_mov_b32 s29, s33\ns_mov_b32 s30, 4608\ns_mov_b32 s31, 0x20000")
    def w_step(land, stride, row0, tag, va=44):
        for ii in range(8):
            ro = (row0 + ii) * stride
            if stride * 3 < 4096:
                if ii % 4 == 0: A(f"s_mov_b32 s15, {ro}")
                A(f"buffer_load_dwordx2 v[{land+2*ii}:{land+2*ii+1}], v{va}, s[28:31], s15 offen offset:{(ii % 4) * stride}{WNT}", tag=tag)
            else:
                A(f"s_mov_b32 s15, {ro}")
                A(f"buffer_load_dwordx2 v[{land+2*ii}:{land+2*ii+1}], v{va}, s[28:31], s15 offen{WNT}", tag=tag)
    def w_lane(stride, rows_per_wave, va=44):
        A(f"v_mul_u32_u24 v{va}, {8*stride}, v2\nv_lshl_add_u32 v{va}, v1, 3, v{va}\ns_mul_i32 s15, s3, {rows_per_wave*stride}\nv_add_u32 v{va}, s15, v{va}")
    def w_perm(F, T):
        for d in range(2):
            for q in range(4):
                a = T + 4 * q + d; b = a + 2
                A(f"v_perm_b32 v{F+8*d+q}, v{b}, v{a}, s58\nv_perm_b32 v{F+8*d+4+q}, v{b}, v{a}, s59")
    def mma4(D, a, F, first):
        for c in range(4):
            d = D + 4 * c
            A(f"v_mfma_f32_16x16x32_bf16 v[{d}:{d+3}], v[{a}:{a+3}], v[{F+4*c}:{F+4*c+3}], " + ("0" if first else f"v[{d}:{d+3}]"))
    def tile_wr(D, va):
        A(f"ds_write2_b32 v{va}, v{D}, v{D+4} offset0:0 offset1:1\nds_write2_b32 v{va}, v{D+8}, v{D+12} offset0:2 offset1:3")
    def tile_sum(n, base, va, dst=8):
        for w in range(n):
            A(f"ds_read_b128 v[{dst+4*w}:{dst+4*w+3}], v{va} offset:{base+1024*w}")
        return n
    def tile_add(n, dst=8, after=0):
        for w in range(1, n):
            A(f"s_waitcnt lgkmcnt({n-1-w+after})")
            A(f"v_pk_add_f32 v[{dst}:{dst+1}], v[{dst}:{dst+1}], v[{dst+4*w}:{dst+4*w+1}]\nv_pk_add_f32 v[{dst+2}:{dst+3}], v[{dst+2}:{dst+3}], v[{dst+4*w+2}:{dst+4*w+3}]")
    def row_reduce2(a, b):
        for n in (8, 4, 2, 1):
            A(f"v_add_f32_dpp v{a}, v{a}, v{a} row_ror:{n} row_mask:0xf bank_mask:0xf")
            A(f"v_add_f32_dpp v{b}, v{b}, v{b} row_ror:{n} row_mask:0xf bank_mask:0xf")
    def stats_finish():
        A(f"v_mul_f32 v48, {f2u(-1/576):#x}, v48\nv_mul_f32 v49, {f2u(1/576):#x}, v49")
        A("v_fma_f32 v49, -v48, v48, v49")
        A(f"v_add_f32 v49, {f2u(1e-5):#x}, v49\nv_rsq_f32 v49, v49")
    def ln_fix(cs):
        A(f"v_pk_fma_f32 v[8:9], v[{cs}:{cs+1}], v[48:49], v[8:9] op_sel_hi:[1,0,1]\nv_pk_fma_f32 v[10:11], v[{cs+2}:{cs+3}], v[48:49], v[10:11] op_sel_hi:[1,0,1]")
    def k_loads(ts):
        for t in ts:
            for s in range(4):
                A(f"buffer_load_dwordx4 v[{KR+16*t+4*s}:{KR+16*t+4*s+3}], v50, s[20:23], s{60+t} offen offset:{(1024 if P.get('sonly', 0) & 8 else 64)*s}{KNT}", tag=f"K{t}")
    def v_loads(ts):
        for t in ts:
            for r in range(4):
                A(f"buffer_load_dwordx4 v[{VR+16*t+4*r}:{VR+16*t+4*r+3}], v51, s[24:27], s{60+t} offen offset:{1024*r}{KNT}", tag=f"V{t}{r}")

    sonly = P.get("sonly", 0)
    if sonly & 8: A("v_mov_b32 v50, v51")
    if sonly & 32: A("v_lshlrev_b32 v50, 8, v1\nv_lshl_add_u32 v50, v2, 4, v50")
    if sonly & 16:
        A("s_lshl_b32 s68, s64, 25\ns_lshl_b32 s69, s4, 22\ns_add_u32 s68, s68, s69\ns_lshl_b32 s69, s65, 21\ns_add_u32 s68, s68, s69")
        A(f"s_lshl_b32 s69, s66, 17\ns_add_u32 s68, s68, s69\ns_add_u32 s68, s68, {6144*256}")
        A("s_add_u32 s20, s34, s68\ns_addc_u32 s21, s35, 0\ns_mov_b32 s22, 0x20000\ns_mov_b32 s23, 0x20000")
        A("s_add_u32 s24, s36, s68\ns_addc_u32 s25, s37, 0\ns_mov_b32 s26, 0x20000\ns_mov_b32 s27, 0x20000")
        def seq(o):
            if o == "F":
                for t in range(4):
                    for q in range(4):
                        A(f"buffer_load_dwordx4 v[{KR+16*t+4*q}:{KR+16*t+4*q+3}], v50, s[20:23], s{60+t} offen offset:{64*q} nt")
                        A(f"buffer_load_dwordx4 v[{VR+16*t+4*q}:{VR+16*t+4*q+3}], v51, s[24:27], s{60+t} offen offset:{1024*q} nt")
                return
            for x in o.split(): (k_loads if x[0] == "K" else v_loads)([int(x[1])])
        o1 = P.get("order", "K0 K1 K2 K3 V0 V1 V2 V3"); o2 = P.get("order2")
        if o2:
            with Cond("o1", P["o2test"].replace("lt", "ge").replace("eq", "lg")): seq(o1)
            with Cond("o2", P["o2test"]): seq(o2)
        else: seq(o1)
        A("s_waitcnt vmcnt(0)"); stamp(13, "all arrived"); A("s_branch L_trace")
    if sonly & 64:
        wt = P.get("wtest", "w1")
        if "w1" in wt:
            with cls(2):
                A("s_mul_i32 s15, s4, 1152\ns_lshl_b32 s28, s12, 7\ns_add_u32 s15, s15, s28")
                srd_tmp(44, "s15", 5308416)
                w_lane(9216, 96)
                for s_ in range(3): w_step(64 + 16 * s_, 9216, 32 * s_, "w1")
        if "w2" in wt:
            with cls(1):
                A(f"s_lshl_b32 s15, s4, 1\ns_add_u32 s15, s15, s11\ns_mul_i32 s15, s15, {288*1152}\ns_lshl_b32 s28, s10, 7\ns_add_u32 s15, s15, s28")
                srd_tmp(48, "s15", 5308416)
                w_lane(1152, 32, 43)
                w_step(64, 1152, 0, "w2", va=43)
                with weq(7): w_step(80, 1152, 32, "w2b", va=43)
        if "wa" in wt:
            A(f"s_lshl_b32 s15, s4, 5\ns_add_u32 s15, s15, s5\ns_mul_i32 s15, s15, 20736\ns_mul_i32 s28, s3, 2592\ns_add_u32 s15, s15, s28")
            srd_tmp(44, "s15", 5308416)
            for s_ in range(3): A(f"buffer_load_dwordx4 v[{64+4*s_}:{67+4*s_}], v51, s[28:31], 0 offen offset:{1024*s_} nt")
        if "wl" in wt:
            with cls(2):
                A(f"s_mul_i32 s15, s4, 9\ns_add_u32 s15, s15, s12\ns_mul_i32 s15, s15, 73728\ns_mul_i32 s28, s3, 12288\ns_add_u32 s15, s15, s28")
                srd_tmp(44, "s15", 5308416)
                for s_ in range(12):
                    if s_ % 4 == 0: A(f"s_mov_b32 s15, {1024*s_}")
                    A(f"buffer_load_dwordx4 v[{64+4*s_}:{67+4*s_}], v51, s[28:31], s15 offen offset:{1024*(s_&3)} nt")
        if "wy" in wt:
            with cls(2):
                A("s_mul_i32 s15, s4, 663552\ns_lshl_b32 s28, s12, 7\ns_add_u32 s15, s15, s28")
                srd_tmp(44, "s15", 5308416)
                w_lane(1152, 96)
                for s_ in range(3): w_step(64 + 16 * s_, 1152, 32 * s_, "w1")
        if "wz" in wt:
            with cls(2):
                A("s_mul_i32 s15, s4, 1152\ns_lshl_b32 s28, s12, 7\ns_add_u32 s15, s15, s28")
                srd_tmp(44, "s15", 5308416)
                w_lane(9216, 48)
                w_step(64, 9216, 0, "w1")
                A("s_mov_b32 exec_hi, 0")
                w_step(80, 9216, 32, "w1")
                fullexec()
        if "wh" in wt:
            with cls(1):
                with wlt(6):
                    A("s_mul_i32 s15, s4, 1152\ns_lshl_b32 s28, s5, 6\ns_add_u32 s15, s15, s28")
                    srd_tmp(44, "s15", 5308416)
                    A("v_lshrrev_b32 v44, 3, v0\nv_mul_u32_u24 v44, 9216, v44\nv_and_b32 v45, 7, v0\nv_lshl_add_u32 v44, v45, 3, v44")
                    A(f"s_mul_i32 s15, s3, {96*9216}\nv_add_u32 v44, s15, v44")
                    for s_ in range(12):
                        A(f"s_mov_b32 s15, {8*9216*s_}")
                        A(f"buffer_load_dwordx2 v[{64+2*s_}:{65+2*s_}], v44, s[28:31], s15 offen nt")
        if "wx" in wt:
            with cls(2):
                A("s_mul_i32 s15, s4, 1152\ns_lshl_b32 s28, s12, 7\ns_add_u32 s15, s15, s28")
                srd_tmp(44, "s15", 5308416)
                A("v_lshrrev_b32 v44, 3, v0\nv_mul_u32_u24 v44, 9216, v44\nv_and_b32 v45, 7, v0\nv_lshl_add_u32 v44, v45, 4, v44")
                A(f"s_mul_i32 s15, s3, {96*9216}\nv_add_u32 v44, s15, v44")
                for s_ in range(12):
                    A(f"s_mov_b32 s15, {8*9216*s_}")
                    A(f"buffer_load_dwordx4 v[{64+4*s_}:{67+4*s_}], v44, s[28:31], s15 offen nt")
        A("s_waitcnt vmcnt(0)"); stamp(13, "all arrived"); A("s_branch L_trace")
    with wlt(0 if sonly & 2 else 5):
        A(f"s_mul_i32 s68, s66, {144*8192}\ns_lshl_b32 s69, s4, 10\ns_add_u32 s68, s68, s69\ns_lshl_b32 s69, s73, 7\ns_add_u32 s68, s68, s69")
        srd_tmp(38, "s68", 4718592)
        w_lane(8192, 32)
        A("s_cmp_eq_u32 s3, 4\ns_cselect_b32 exec_hi, 0, -1")
        w_step(24, 8192, 0, "wq")
        srd_x0()
        A("s_mul_i32 s15, s66, 288\ns_lshl_b32 s68, s3, 6\ns_add_u32 s15, s15, s68")
        A("buffer_load_dwordx4 v[8:11], v46, s[28:31], s15 offen", tag="x0f")
        fullexec()
    A("buffer_load_dword v55, off, s[16:19], 0 sc1", tag="E")
    with weq(6):
        srd_x0()
        A("v_mul_u32_u24 v44, 1152, v2\nv_lshl_add_u32 v44, v1, 4, v44")
        for u in range(4):
            A(f"buffer_load_dwordx4 v[{8+4*u}:{11+4*u}], v44, s[28:31], 0 offen offset:{256*u}", tag="x0s")
        setexec(0x00ff00ff, 0x00ff00ff)
        A("buffer_load_dwordx4 v[24:27], v44, s[28:31], 0 offen offset:1024", tag="x0s")
        fullexec()
    with weq(7):
        A("v_mov_b32 v4, -1\nv_mov_b32 v5, -1\nv_mov_b32 v6, -1\nv_mov_b32 v7, -1")
        A("s_lshl_b32 s68, s5, 11\ns_add_u32 s68, s68, s14")
        A("buffer_store_dwordx4 v[4:7], v51, s[16:19], s68 offen sc1", tag="rst")
        A("buffer_store_dwordx4 v[4:7], v51, s[16:19], s68 offen offset:1024 sc1", tag="rst")
    A("s_lshl_b32 s68, s64, 25\ns_lshl_b32 s69, s4, 22\ns_add_u32 s68, s68, s69\ns_lshl_b32 s69, s65, 21\ns_add_u32 s68, s68, s69")
    A(f"s_lshl_b32 s69, s66, 17\ns_add_u32 s68, s68, s69\ns_add_u32 s68, s68, {6144*256}")
    A("s_add_u32 s20, s34, s68\ns_addc_u32 s21, s35, 0\ns_mov_b32 s22, 0x20000\ns_mov_b32 s23, 0x20000")
    A("s_add_u32 s24, s36, s68\ns_addc_u32 s25, s37, 0\ns_mov_b32 s26, 0x20000\ns_mov_b32 s27, 0x20000")
    if flow:
        with weq(5):
            A(f"v_mov_b32 v4, 0\nv_mov_b32 v5, 0\nds_write_b64 v4, v[4:5] offset:{L_CNT}\ns_waitcnt lgkmcnt(0)")
    prio = P.get("prio", 1)
    if prio:
        with wne(5): A("s_setprio 3")
    if P.get("bar0", 1): A("s_barrier")
    seq1, seq2 = [x.split() for x in P.get("seq", "K0 | V0 K1 V1 W K2 K3 V2 Q V3").split("|")]
    lastK = [x for x in seq1 + seq2 if x[0] == "K"][-1]
    for x in seq1: (k_loads if x[0] == "K" else v_loads)([int(x[1])])
    def getT():
        A.wait_vm("E")
        A("v_readfirstlane_b32 s7, v55")
        A("s_nop 0\ns_add_u32 s7, s7, 1\ns_and_b32 s6, s7, 0xff\nv_mov_b32 v55, 0xffffff00")
    with wlt(0 if sonly & 2 else 5):
        A.wait_vm("x0f")
        stamp(5, "wq arrived")
        w_perm(WQF, 24)
        mma4(24, 8, WQF, True)
        mma4(SL, 12, WQF, True)
        A(f"v_add_u32 v47, {L_CS}, v45\nv_add_u32 v45, {L_T}, v45")
        tile_wr(24, 45); tile_wr(SL, 47)
        A("s_waitcnt lgkmcnt(0)")
        if flow:
            A(f"v_mov_b32 v4, 0\nv_mov_b32 v5, 1\ns_mov_b64 exec, 1\nds_add_u32 v4, v5 offset:{L_CNT}")
            fullexec()
    with weq(6):
        A.wait_vm("x0s")
        A("v_mov_b32 v28, 0x3f803f80\nv_mov_b32 v48, 0\nv_mov_b32 v49, 0")
        for k in range(8, 28):
            A(f"v_dot2_f32_bf16 v48, v{k}, v28, v48")
        for k in range(8, 28):
            A(f"v_dot2_f32_bf16 v49, v{k}, v{k}, v49")
        row_reduce2(48, 49)
        stats_finish()
        A(f"v_mul_f32 v49, {f2u(QSCALE):#x}, v49")
    if not flow: getT()
    def q_addr(L):
        A(f"v_lshlrev_b32 v44, 11, v2\nv_lshl_add_u32 v44, v1, 4, v44")
        A(f"s_lshl_b32 s70, s4, 15\ns_lshl_b32 s71, s66, 13\ns_add_u32 s70, s70, s71\ns_lshl_b32 s71, s73, 8\ns_add_u32 s70, s70, s71\ns_add_u32 s70, s70, {QA[L]}")
    def q_out():
        A("v_pk_mul_f32 v[8:9], v[8:9], v[48:49] op_sel:[0,1] op_sel_hi:[1,1]\nv_pk_mul_f32 v[10:11], v[10:11], v[48:49] op_sel:[0,1] op_sel_hi:[1,1]")
        A("v_and_or_b32 v8, v8, v55, s6")
    with weq(7):
        if flow: getT()
        A("v_mov_b32 v4, s7\nv_mov_b32 v5, s67")
        A(f"s_lshl_b32 s68, s4, 5\ns_add_u32 s68, s68, s5\ns_lshl_b32 s68, s68, 7\ns_add_u32 s68, s68, {FLAGS}")
        if not flow: A("s_barrier")
        A.wait_vm("rst")
        A("s_mov_b64 exec, 1")
        A("buffer_store_dwordx2 v[4:5], off, s[16:19], s68 sc1")
        fullexec()
    def lds_wait(off, val, ra, rd, slp=1):
        lp = A.L("Lcnt"); ld = A.L("Lcntd")
        A(f"v_mov_b32 v{ra}, 0")
        A.label(lp)
        A(f"ds_read_b32 v{rd}, v{ra} offset:{off}\ns_waitcnt lgkmcnt(0)\nv_readfirstlane_b32 s15, v{rd}")
        A(f"s_nop 0\ns_cmp_eq_u32 s15, {val}\ns_cbranch_scc1 {ld}")
        A(f"s_sleep {slp}\ns_sub_u32 s8, s8, 1\ns_cbranch_scc0 {lp}\ns_mov_b32 s8, 0")
        A.label(ld)
    qflag = P.get("qflag", 1)
    def q0_final():
        tile_sum(5, L_T, 51, 8); tile_sum(5, L_CS, 51, 56)
        tile_add(5, 8, after=5); tile_add(5, 56)
        ln_fix(56)
        q_out()
        A("buffer_store_dwordx4 v[8:11], v44, s[16:19], s70 offen sc1")
        stamp(4, "q0 stored")
    if flow:
        with weq(99 if sonly & 2 else 6):
            getT(); q_addr(0)
            lds_wait(L_CNT, 5, 4, 5)
            q0_final()
    else:
        with wne(7):
            with weq(6):
                q_addr(0)
            A("s_barrier")
            with weq(6):
                q0_final()
        A("s_barrier")
    if prio: A("s_setprio 0")
    with isW1():
        with weq(6):
            A("s_mul_i32 s68, s4, 1152\ns_lshl_b32 s69, s12, 7\ns_add_u32 s68, s68, s69")
            srd_tmp(46, "s68", 9216)
            A("v_lshlrev_b32 v44, 3, v1")
            A(f"buffer_load_dwordx2 v[88:89], v44, s[28:31], 0 offen", tag="b1")
    with isR():
        A("v_and_b32 v44, 7, v0\nv_lshlrev_b32 v44, 3, v44\nv_lshrrev_b32 v45, 5, v0\nv_lshl_add_u32 v44, v45, 2, v44")
        A("s_lshl_b32 s68, s13, 6")
        srd_tmp(50, "s68", 1152)
        A(f"buffer_load_dword v{SL+1}, v44, s[28:31], 0 offen", tag="b2")
        A(f"v_bfe_u32 v45, v0, 3, 2\nv_mul_u32_u24 v45, 1152, v45\nv_add3_u32 v{SL+2}, v44, v45, s68")
        srd_x0()
        A(f"buffer_load_dword v{SL}, v{SL+2}, s[28:31], 0 offen", tag="xres")
    def wo_loads():
        with cls(1):
            A(f"s_lshl_b32 s15, s4, 1\ns_add_u32 s15, s15, s11\ns_mul_i32 s15, s15, {256*1152}\ns_lshl_b32 s28, s10, 7\ns_add_u32 s15, s15, s28")
            srd_tmp(40, "s15", 4718592)
            w_lane(1152, 32)
            w_step(SL + 8, 1152, 0, "wo")
    def w1_loads(steps):
        A("s_mul_i32 s15, s4, 1152\ns_lshl_b32 s28, s12, 7\ns_add_u32 s15, s15, s28")
        srd_tmp(44, "s15", 5308416)
        w_lane(9216, 96)
        for s in steps: w_step(LS[s], 9216, 32 * s, "w1")
    def w_early():
        if sonly & 4: return
        wo_loads()
        if w1early:
            with cls(2): w1_loads(range(w1early))
    def q_loads(L):
        return [f"buffer_load_dwordx4 v[{8+4*k}:{11+4*k}], v{47}, s[16:19], s{68+k} offen sc1" for k in range(4)]
    def q_laddr(L):
        A(f"s_lshl_b32 s68, s4, 15\ns_lshl_b32 s69, s64, 11\ns_add_u32 s68, s68, s69\ns_lshl_b32 s69, s65, 10\ns_add_u32 s68, s68, s69\ns_add_u32 s68, s68, {QA[L]}")
        A("s_add_u32 s69, s68, 8192\ns_add_u32 s70, s68, 16384\ns_add_u32 s71, s68, 24576\nv_lshlrev_b32 v47, 4, v0")
    def q_finish():
        A("v_pk_add_f32 v[8:9], v[8:9], v[12:13]\nv_pk_add_f32 v[10:11], v[10:11], v[14:15]")
        A("v_pk_add_f32 v[16:17], v[16:17], v[20:21]\nv_pk_add_f32 v[18:19], v[18:19], v[22:23]")
        A("v_pk_add_f32 v[8:9], v[8:9], v[16:17]\nv_pk_add_f32 v[10:11], v[10:11], v[18:19]")
        A("v_cvt_pk_bf16_f32 v8, v8, v9\nv_cvt_pk_bf16_f32 v9, v10, v11\nv_lshlrev_b32 v10, 3, v0")
        A(f"ds_write_b64 v10, v[8:9] offset:{L_Q}\ns_waitcnt lgkmcnt(0)")
    def q_early():
        with weq(0):
            q_laddr(0)
            for t in q_loads(0): A(t, tag="q0")
        with weq(7):
            A("v_and_b32 v8, 31, v0\ns_lshl_b32 s68, s4, 5\nv_add_u32 v8, s68, v8")
            A(f"v_lshlrev_b32 v6, 7, v8\ns_mov_b32 s71, {FLAGS}")
            A("buffer_load_dwordx2 v[4:5], v6, s[16:19], s71 offen sc1", tag="fl")
    for x in seq2:
        if x == "W": w_early()
        elif x == "Q": q_early()
        else: (k_loads if x[0] == "K" else v_loads)([int(x[1])])
    def w2_loads():
        A(f"s_lshl_b32 s15, s4, 1\ns_add_u32 s15, s15, s11\ns_mul_i32 s15, s15, {288*1152}\ns_lshl_b32 s28, s10, 7\ns_add_u32 s15, s15, s28")
        srd_tmp(48, "s15", 5308416)
        w_lane(1152, 32, 43)
        w_step(LS[1], 1152, 0, "w2", va=43)
        with weq(7):
            w_step(LS[2], 1152, 32, "w2b", va=43)
    stamp(1, "loads issued")
    if sonly:
        A("s_waitcnt vmcnt(0)"); stamp(13, "all arrived"); A("s_branch L_trace")
    if flow:
        with wlt(6): getT()
    def q0_wait():
        with weq(0):
            A.wait_vm("q0")
            lp = A.L("Lq0"); ld = A.L("Lq0d")
            A.label(lp)
            chk_tag([8, 12, 16, 20], 4)
            A(f"s_cbranch_vccz {ld}")
            A(f"s_sub_u32 s8, s8, 1\ns_cbranch_scc1 {ld}x")
            A.push_cond("never")
            for t in q_loads(0): A(t)
            A.pop_cond()
            A(f"s_waitcnt vmcnt(0)\ns_branch {lp}")
            A.label(ld + "x")
            A("s_mov_b32 s8, 0")
            A.label(ld)
            q_finish()
            if qflag: A(f"v_mov_b32 v10, 0\nv_mov_b32 v11, 1\nds_write_b32 v10, v11 offset:{L_CNT+4}")

    def lse_gate(L):
        A(f"v_lshlrev_b32 v46, 9, v2\nv_lshl_add_u32 v46, v1, 2, v46\ns_add_u32 s15, s14, {LSE_OFF[L]}")
        if w1gate == 2:
            lp = A.L("Lg"); ld = A.L("Lgd")
            A.label(lp)
            A("buffer_load_dword v47, v46, s[16:19], s15 offen sc1\ns_waitcnt vmcnt(0)\nv_cmp_eq_u32 vcc, -1, v47")
            A(f"s_bcnt1_i32_b64 s28, vcc\ns_cmp_le_u32 s28, {P.get('gcnt', 16)}\ns_cbranch_scc1 {ld}")
            A(f"s_sleep 2\ns_sub_u32 s8, s8, 1\ns_cbranch_scc0 {lp}\ns_mov_b32 s8, 0")
            A.label(ld)
        else:
            poll(["buffer_load_dword v47, v46, s[16:19], s15 offen sc1"], [47, 47], 45)
    RO, RS = 45, 7
    def comb_addr(L):
        if vt: A(f"s_lshl_b32 s15, s3, 2\nv_lshl_add_u32 v{RO}, v0, 3, s15")
        else: A(f"v_lshlrev_b32 v{RO}, 4, v0\ns_lshl_b32 s15, s3, 3\nv_add_u32 v{RO}, s15, v{RO}")
        A(f"v_and_b32 v{RS}, 7, v0\ns_lshl_b32 s15, s3, 6\nv_lshl_add_u32 v{RS}, v{RS}, 3, s15")
        A("s_lshl_b32 s62, s65, 1\ns_add_u32 s62, s62, s3")
        A(f"s_lshl_b32 s60, s62, 12\ns_lshl_b32 s15, s64, 8\ns_add_u32 s60, s60, s15\ns_lshl_b32 s15, s66, 6\ns_add_u32 s60, s60, s15\ns_add_u32 s60, s60, s14\ns_add_u32 s60, s60, {O_OFF[L]}")
        A(f"s_lshl_b32 s61, s62, 9\ns_lshl_b32 s15, s64, 4\ns_add_u32 s61, s61, s15\ns_lshl_b32 s15, s66, 2\ns_add_u32 s61, s61, s15\ns_add_u32 s61, s61, s14\ns_add_u32 s61, s61, {LSE_OFF[L]}")
        if vt: A("v_lshlrev_b32 v44, 10, v2\nv_lshl_add_u32 v44, v1, 2, v44")
        else: A("v_lshrrev_b32 v44, 2, v1\nv_lshlrev_b32 v44, 10, v44\nv_and_b32 v46, 3, v0\nv_lshl_add_u32 v44, v46, 4, v44\nv_lshl_add_u32 v44, v2, 2, v44")
    def att_pre(L):
        if not vt: return
        A("v_and_b32 v54, 1, v0\nv_lshlrev_b32 v54, 8, v54\nv_lshl_add_u32 v54, v2, 4, v54")
        A("s_lshl_b32 s15, s3, 10\nv_lshl_add_u32 v46, v0, 5, s15\ns_lshl_b32 s15, s3, 3\nv_lshl_add_u32 v3, v0, 6, s15")
        comb_addr(L)
    def att_vt(L):
        qprio = P.get("qprio", 1)
        cur = [99]
        def wv(tag):
            if L == 0 and A.vm_after(tag) < cur[0]: cur[0] = A.wait_vm(tag)
        def vperm(u, e):
            for a in range(4):
                lo = VR + 16 * (2 * u + (a >> 1)) + 8 * (a & 1) + (e >> 1)
                A(f"v_perm_b32 v{VT[u]+4*e+a}, v{lo+4}, v{lo}, s{58 + (e & 1)}")
        if L == 1:
            with isR(): A("s_waitcnt vmcnt(0)")
        allq = seq1 + seq2
        pre0 = allq.index("V0") < allq.index(lastK) and allq.index("V1") < allq.index(lastK)
        prew = "W" in allq and allq.index("W") < allq.index(lastK)
        if L == 0:
            if pre0:
                wv("V03"); wv("V13")
                for e in range(8): vperm(0, e)
            if prew and not (sonly & 4):
                with cls(1): A.wait_vm("wo"); w_perm(SL, SL + 8)
        if L == 0 and qflag: lds_wait(L_CNT + 4, 1, 52, 53, 4)
        else: A("s_barrier")
        stamp(2 + L, "att start")
        for s in range(4):
            A(f"ds_read_b128 v[{8+4*s}:{11+4*s}], v54 offset:{L_Q+64*s}")
        if qprio: A("s_setprio 1")
        def sel(t, r):
            A(f"v_mov_b32_dpp v{24+r}, v{24+4*t+r} quad_perm:[0,1,2,3] row_mask:0xf bank_mask:{1<<t:#x}")
        for t in range(4):
            wv(f"K{t}")
            if t == 3: stamp(8, "K arrived", L + 1)
            for s in range(4):
                if t == 0: A(f"s_waitcnt lgkmcnt({3-s})")
                d = 24 + 4 * t
                A(f"v_mfma_f32_16x16x32_bf16 v[{d}:{d+3}], v[{KR+16*t+4*s}:{KR+16*t+4*s+3}], v[{8+4*s}:{11+4*s}], " + ("0" if s == 0 else f"v[{d}:{d+3}]"))
                if t == 3 and s < 2:
                    sel(1, 2 * s); sel(1, 2 * s + 1)
                if t == 3 and s >= 2:
                    sel(2, 2 * (s - 2)); sel(2, 2 * (s - 2) + 1)
        if qprio: A(f"s_setprio {P.get('sprio', 0)}")
        stamp(9, "qk issued", L + 1)
        A("v_max3_f32 v53, v24, v25, v26\nv_max_f32 v53, v53, v27")
        A("v_max_f32_dpp v53, v53, v53 row_ror:4 row_mask:0xf bank_mask:0xf")
        A("v_max_f32_dpp v53, v53, v53 row_ror:8 row_mask:0xf bank_mask:0xf")
        A("v_max3_f32 v52, v36, v37, v53\nv_max3_f32 v52, v38, v39, v52\nv_mov_b32 v54, v52")
        sel(3, 0); sel(3, 1)
        A("v_permlane16_swap_b32 v54, v52\nv_max_f32 v52, v52, v54\nv_mov_b32 v54, v52")
        sel(3, 2); sel(3, 3)
        A("v_permlane32_swap_b32 v54, v52\nv_max_f32 v52, v52, v54")
        for r in range(4): A(f"v_sub_f32 v{48+r}, v{24+r}, v52")
        for r in range(4): A(f"v_exp_f32 v{48+r}, v{48+r}")
        A("v_cvt_pk_bf16_f32 v40, v48, v49\nv_cvt_pk_bf16_f32 v41, v50, v51")
        A("v_add_f32 v53, v48, v49")
        A("v_mov_b32_dpp v42, v40 row_ror:12 row_mask:0xf bank_mask:0xf\nv_mov_b32_dpp v43, v41 row_ror:12 row_mask:0xf bank_mask:0xf")
        if qprio and P.get('sprio', 0): A("s_setprio 0")
        stamp(10, "softmax done", L + 1)
        if L == 0:
            if not pre0:
                wv("V03"); wv("V13")
                for e in range(8): vperm(0, e)
            if not prew and not (sonly & 4):
                with cls(1): A.wait_vm("wo"); w_perm(SL, SL + 8)
        extra = ["v_mov_b32_dpp v56, v40 row_ror:8 row_mask:0xf bank_mask:0xf"]
        extra = ["v_add_f32 v54, v50, v51",
                 "v_mov_b32_dpp v48, v40 row_ror:8 row_mask:0xf bank_mask:0xf", "v_mov_b32_dpp v49, v41 row_ror:8 row_mask:0xf bank_mask:0xf",
                 "v_mov_b32_dpp v50, v40 row_ror:4 row_mask:0xf bank_mask:0xf", "v_mov_b32_dpp v51, v41 row_ror:4 row_mask:0xf bank_mask:0xf",
                 "v_add_f32 v53, v53, v54",
                 "v_add_f32_dpp v53, v53, v53 row_ror:4 row_mask:0xf bank_mask:0xf",
                 "v_add_f32_dpp v53, v53, v53 row_ror:8 row_mask:0xf bank_mask:0xf",
                 "v_mov_b32 v54, v53", "v_permlane16_swap_b32 v54, v53", "v_add_f32 v53, v53, v54",
                 "v_mov_b32 v54, v53", "v_permlane32_swap_b32 v54, v53", "v_add_f32 v53, v53, v54"]
        for u in range(2):
            if u == 1 and L == 0:
                while extra: A(extra.pop(0))
                wv("V23"); flag_check(); wv("V33")
                stamp(11, "V arrived", L + 1)
                vperm(1, 0)
            for e in range(8):
                d = 8 + 4 * e; a = 40 + 8 * u
                if u == 1 and L == 0 and e < 7: vperm(1, e + 1)
                A(f"v_mfma_f32_16x16x32_bf16 v[{d}:{d+3}], v[{a}:{a+3}], v[{VT[u]+4*e}:{VT[u]+4*e+3}], " + ("0" if u == 0 else f"v[{d}:{d+3}]"))
                for _ in range(1 if len(extra) < 9 else 2):
                    if extra: A(extra.pop(0))
        if L == 1: stamp(11, "pv issued", L + 1)
        if L == 0: stamp(13, "pv done")
        A("s_mov_b64 exec, 3")
        A(f"ds_write_b64 v3, v[52:53] offset:{L_ST}")
        A("s_mov_b64 exec, 0xffff")
        for c in range(4):
            A(f"ds_write2_b64 v46, v[{8+8*c}:{9+8*c}], v[{12+8*c}:{13+8*c}] offset0:{L_O//8+c} offset1:{(L_O+512)//8+c}")
        fullexec()

    def att(L):
        if L == 0:
            att_pre(0); q0_wait()
        if vt: att_vt(L)
        else: att_old(L)
        att_tail(L)
    def att_old(L):
        if L == 1:
            with isR(): A("s_waitcnt vmcnt(0)")
        for k in range(44, 52): A(f"v_mov_b32 v{k}, 0")
        A(f"v_bfe_u32 v54, v0, 1, 1\nv_lshlrev_b32 v54, 8, v54\nv_lshl_add_u32 v54, v2, 4, v54")
        if L == 0 and qflag: lds_wait(L_CNT + 4, 1, 52, 53, 4)
        else: A("s_barrier")
        stamp(2 + L, "att start")
        for s in range(4):
            A(f"ds_read_b128 v[{8+4*s}:{11+4*s}], v54 offset:{L_Q+64*s}")
        def sel(t, r):
            A(f"v_mov_b32_dpp v{24+r}, v{24+4*t+r} quad_perm:[0,1,2,3] row_mask:0xf bank_mask:{1<<t:#x}")
        if L == 0: curw = [A.wait_vm(lastK)]
        stamp(8, "K arrived", L + 1)
        for t in range(4):
            for s in range(4):
                if t == 0: A(f"s_waitcnt lgkmcnt({3-s})")
                d = 24 + 4 * t
                A(f"v_mfma_f32_16x16x32_bf16 v[{d}:{d+3}], v[{KR+16*t+4*s}:{KR+16*t+4*s+3}], v[{8+4*s}:{11+4*s}], " + ("0" if s == 0 else f"v[{d}:{d+3}]"))
                if t == 3 and s < 2:
                    sel(1, 2 * s); sel(1, 2 * s + 1)
                if t == 3 and s >= 2:
                    sel(2, 2 * (s - 2)); sel(2, 2 * (s - 2) + 1)
        stamp(9, "qk issued", L + 1)
        for r in range(4): sel(3, r)
        A("v_max3_f32 v52, v24, v25, v26\nv_max_f32 v52, v52, v27")
        A("v_max_f32_dpp v52, v52, v52 row_ror:4 row_mask:0xf bank_mask:0xf")
        A("v_max_f32_dpp v52, v52, v52 row_ror:8 row_mask:0xf bank_mask:0xf")
        A("v_mov_b32 v54, v52\nv_permlane16_swap_b32 v54, v52\nv_max_f32 v52, v52, v54")
        A("v_mov_b32 v54, v52\nv_permlane32_swap_b32 v54, v52\nv_max_f32 v52, v52, v54")
        for r in range(4): A(f"v_sub_f32 v{24+r}, v{24+r}, v52")
        for r in range(4): A(f"v_exp_f32 v{24+r}, v{24+r}")
        for r in range(4): A(f"v_cvt_pk_bf16_f32 v{28+r}, v{24+r}, v{24+r}")
        stamp(10, "softmax done", L + 1)
        if L == 0 and not (sonly & 4):
            with cls(1): A.wait_vm("wo"); w_perm(SL, SL + 8)
        def abuild(k):
            t, r = divmod(k, 4); buf = 44 + 4 * (k & 1)
            for a in range(4):
                n = 4 * ((a - t) & 3)
                mod = f"row_ror:{n}" if n else "quad_perm:[0,1,2,3]"
                A(f"v_and_b32_dpp v{buf+a}, v{28+r}, v3 {mod} row_mask:0xf bank_mask:{1<<a:#x}")
        def pv():
            extra = ["v_add_f32 v53, v24, v25", "v_add_f32 v54, v26, v27", "v_add_f32 v53, v53, v54",
                     "v_add_f32_dpp v53, v53, v53 row_ror:4 row_mask:0xf bank_mask:0xf",
                     "v_add_f32_dpp v53, v53, v53 row_ror:8 row_mask:0xf bank_mask:0xf",
                     "v_mov_b32 v54, v53", "v_permlane16_swap_b32 v54, v53", "v_add_f32 v53, v53, v54",
                     "v_mov_b32 v54, v53", "v_permlane32_swap_b32 v54, v53", "v_add_f32 v53, v53, v54",
                     f"v_lshlrev_b32 v8, 4, v0", "s_lshl_b32 s15, s3, 10", "v_add_u32 v8, s15, v8",
                     "v_lshlrev_b32 v9, 5, v0", "s_lshl_b32 s15, s3, 3", "v_add_u32 v9, s15, v9"]
            abuild(0); abuild(1)
            for k in range(16):
                t, r = divmod(k, 4); buf = 44 + 4 * (k & 1)
                if L == 0 and A.vm_after(f"V{t}{r}") < curw[0]: curw[0] = A.wait_vm(f"V{t}{r}")
                if k == 15: stamp(11, "V arrived", L + 1)
                A(f"v_mfma_f32_16x16x32_bf16 v[40:43], v[{buf}:{buf+3}], v[{VR+16*t+4*r}:{VR+16*t+4*r+3}], " + ("0" if k == 0 else "v[40:43]"))
                if k + 2 < 16: abuild(k + 2)
                for _ in range(2 if k >= 12 else 1):
                    if extra: A(extra.pop(0))
            while extra: A(extra.pop(0))
        pv()
        if L == 0: stamp(13, "pv done")
        A("s_mov_b64 exec, 5")
        A(f"ds_write_b64 v9, v[52:53] offset:{L_ST}")
        fullexec()
        A(f"ds_write_b128 v8, v[40:43] offset:{L_O}")
    def flag_check():
        if True:
            with weq(7):
                lp = A.L("Lfl"); ld = A.L("Lfld")
                A.wait_vm("fl")
                A.label(lp)
                A("v_cmp_ne_u32 vcc, s7, v4")
                A(f"s_cbranch_vccz {ld}")
                A(f"s_sub_u32 s8, s8, 1\ns_cbranch_scc1 {ld}x")
                A.push_cond("never")
                A("buffer_load_dwordx2 v[4:5], v6, s[16:19], s71 offen sc1")
                A.pop_cond()
                A(f"s_waitcnt vmcnt(0)\ns_branch {lp}")
                A.label(ld + "x")
                A("s_mov_b32 s8, 0")
                A.label(ld)
                A("v_cmp_ne_u32 vcc, s67, v5")
                A("s_nop 3\nv_mov_b32 v4, vcc_lo\nv_mov_b32 v5, 0")
                if P.get("force_slow"): A("v_mov_b32 v4, 1")
                A(f"ds_write_b32 v5, v4 offset:{L_MODE}")
    def att_tail(L):
        if L == 0 and not vt: flag_check()
        if not vt: comb_addr(L)
        A("s_waitcnt lgkmcnt(0)")
        stamp(12, "pre barrier", L + 1)
        A("s_barrier")
        stamp(13, "post barrier", L + 1)
        if L == 0:
            A(f"v_mov_b32 v5, 0\nds_read_b32 v4, v5 offset:{L_MODE}")
        with wlt(2):
            A(f"ds_read_b64 v[52:53], v{RS} offset:{L_ST}")
            for w in range(8):
                if vt: A(f"ds_read2st64_b32 v[{8+2*w}:{9+2*w}], v{RO} offset0:{(L_O+1024*w)//256} offset1:{(L_O+1024*w)//256+2}")
                else: A(f"ds_read_b64 v[{8+2*w}:{9+2*w}], v{RO} offset:{L_O+1024*w}")
            A("v_lshlrev_b32 v29, 7, v0")
            A("s_waitcnt lgkmcnt(8)")
            A("v_max_f32_dpp v54, v52, v52 quad_perm:[1,0,3,2] row_mask:0xf bank_mask:0xf")
            A("v_max_f32_dpp v54, v54, v54 quad_perm:[2,3,0,1] row_mask:0xf bank_mask:0xf")
            A("v_max_f32_dpp v54, v54, v54 row_half_mirror row_mask:0xf bank_mask:0xf")
            A("v_sub_f32 v52, v52, v54\nv_exp_f32 v52, v52\nv_mul_f32 v53, v53, v52")
            rl = [f"v_readlane_b32 s{20+w}, v52, {w}" for w in range(8)]
            A(rl[0]); A(rl[1])
            A("v_add_f32_dpp v53, v53, v53 quad_perm:[1,0,3,2] row_mask:0xf bank_mask:0xf")
            A(rl[2]); A(rl[3])
            A("v_add_f32_dpp v53, v53, v53 quad_perm:[2,3,0,1] row_mask:0xf bank_mask:0xf")
            A(rl[4]); A(rl[5])
            A("v_add_f32_dpp v53, v53, v53 row_half_mirror row_mask:0xf bank_mask:0xf")
            A(rl[6]); A(rl[7])
            A("v_rcp_f32 v28, v53")
            A("s_waitcnt lgkmcnt(0)")
            if L == 0: A("v_readfirstlane_b32 s9, v4")
            for w in range(8):
                dst = 24 + 2 * (w & 1)
                sel_ = "op_sel_hi:[1,0]" if w % 2 == 0 else "op_sel:[0,1] op_sel_hi:[1,1]"
                sel3 = "op_sel_hi:[1,0,1]" if w % 2 == 0 else "op_sel:[0,1,0] op_sel_hi:[1,1,1]"
                sp = 20 + (w & ~1)
                if w < 2: A(f"v_pk_mul_f32 v[{dst}:{dst+1}], v[{8+2*w}:{9+2*w}], s[{sp}:{sp+1}] {sel_}")
                else: A(f"v_pk_fma_f32 v[{dst}:{dst+1}], v[{8+2*w}:{9+2*w}], s[{sp}:{sp+1}], v[{dst}:{dst+1}] {sel3}")
            A("v_log_f32 v53, v53")
            A("v_pk_add_f32 v[24:25], v[24:25], v[26:27]")
            A("v_mul_f32 v24, v24, v28\nv_mul_f32 v25, v25, v28")
            A("v_cvt_pk_bf16_f32 v24, v24, v25")
            A("v_add_f32 v53, v53, v54")
            hstore("buffer_store_dword v24, v44, s[16:19], s60 offen\ns_mov_b64 exec, 15\nbuffer_store_dword v53, v29, s[16:19], s61 offen")
            fullexec()
            stamp(4 + 2 * L, "O stored")
        if L == 0:
            with Cond("w>=2", "s_cmp_ge_u32 s3, 2"): A("s_waitcnt lgkmcnt(0)\nv_readfirstlane_b32 s9, v4")
            if w1early < 3:
                with isW1(): A("s_barrier")
            with cls(2):
                if w1early < 3:
                    if w1gate: lse_gate(0)
                    w1_loads(range(w1early, 3))
                A("s_waitcnt vmcnt(0)")
                for s in range(3): w_perm(FS[s], LS[s])
                for k in range(12, 16): A(f"v_mov_b32 v{k}, 0x3f803f80")
                for s in range(3): mma4(24, 12, FS[s], s == 0)
                tile_addr(47); A(f"v_add_u32 v47, {L_CS}, v47")
                tile_wr(24, 47)

    def part_addr(slot):
        A("v_lshrrev_b32 v44, 3, v1\nv_lshlrev_b32 v44, 13, v44\nv_lshl_add_u32 v44, v2, 7, v44\nv_and_b32 v43, 7, v1\nv_lshl_add_u32 v44, v43, 4, v44")
        A(f"s_lshl_b32 s68, s10, 14\ns_lshl_b32 s69, s4, 10\ns_add_u32 s68, s68, s69\ns_lshl_b32 s69, s11, 9\ns_add_u32 s68, s68, s69\ns_add_u32 s68, s68, {AREA_A + slot*SLOT_SZ}")
    def part_final(st):
        A("v_lshlrev_b32 v46, 4, v0")
        tile_sum(8, L_T, 46, 8); tile_add(8, 8)
        A("v_and_or_b32 v8, v8, v55, s6")
        A(f"buffer_store_dwordx4 v[8:11], v44, s[16:19], s68 offen {P.get('pst', 'sc1')}")
        stamp(st, "partial stored")

    def wo_stage(L):
        with isWO():
            A("s_lshr_b32 s68, s3, 2\ns_lshl_b32 s69, s11, 1\ns_add_u32 s68, s68, s69\ns_and_b32 s69, s3, 3")
            A(f"s_lshl_b32 s70, s68, 12\ns_lshl_b32 s69, s69, 10\ns_add_u32 s70, s70, s69\ns_add_u32 s70, s70, s14\ns_add_u32 s70, s70, {O_OFF[L]}")
            A(f"s_lshl_b32 s71, s68, 9\ns_lshr_b32 s69, s69, {3 if P.get('lrep', 1) else 13}\ns_add_u32 s71, s71, s69\ns_add_u32 s71, s71, s14\ns_add_u32 s71, s71, {LSE_OFF[L]}")
            A("v_lshlrev_b32 v42, 6, v1\nv_lshl_add_u32 v42, v2, 4, v42\nv_lshlrev_b32 v45, 4, v2")
            tile_addr(46)
            part_addr(SLOT_PO[L])
            poll(["buffer_load_dwordx4 v[8:11], v42, s[16:19], s70 offen sc1",
                  "buffer_load_dwordx4 v[16:19], v45, s[16:19], s71 offen sc1"], [8, 9, 10, 11, 16, 17, 18, 19], 47, kind="o")
            if trace:
                with wlt(6): stamp(8 + L, "wo poll done")
            mma4(24, 8, SL, True)
            A("v_max3_f32 v20, v16, v17, v18\nv_max_f32 v20, v20, v19")
            for r in range(4): A(f"v_sub_f32 v{16+r}, v{16+r}, v20")
            for r in range(4): A(f"v_exp_f32 v{16+r}, v{16+r}")
            A("v_add_f32 v20, v16, v17\nv_add_f32 v21, v18, v19\nv_add_f32 v20, v20, v21\nv_rcp_f32 v20, v20")
            A("v_pk_mul_f32 v[16:17], v[16:17], v[20:21] op_sel_hi:[1,0]\nv_pk_mul_f32 v[18:19], v[18:19], v[20:21] op_sel_hi:[1,0]")
            if L == 0 and w2pos == 0: w2_loads()
            for c in range(4):
                A(f"v_pk_mul_f32 v[{24+4*c}:{25+4*c}], v[{24+4*c}:{25+4*c}], v[16:17]")
            for c in range(4):
                A(f"v_pk_fma_f32 v[{24+4*c}:{25+4*c}], v[{26+4*c}:{27+4*c}], v[18:19], v[{24+4*c}:{25+4*c}]")
            for c in range(4):
                A(f"v_add_f32 v{12+c}, v{24+4*c}, v{25+4*c}")
            A(f"ds_write_b128 v46, v[12:15] offset:{L_T}")
            A("s_waitcnt lgkmcnt(0)\ns_barrier")
            with weq(0):
                part_final(5 + 2 * L)
            if L == 0:
                if w2pos == 2: A("s_barrier")
                if w2pos >= 1: w2_loads()
                A("s_waitcnt vmcnt(0)")
                w_perm(FS[1], LS[1])
                with weq(7): w_perm(FS[2], LS[2])

    rpipe = P.get("rpipe", 0); RB = 224 if vt else 96; C = 56
    def r_stage(L, kind):
        final = (L == 1 and kind == 1)
        slot = (SLOT_PO if kind == 0 else SLOT_P2)[L]
        def issue(X):
            for u in range(8):
                A(f"buffer_load_dwordx4 v[{X+4*u}:{X+3+4*u}], v44, s[16:19], s{68 if u < 4 else 71} offen offset:{1024*(u&3)} {P.get('pld', 'sc1')}")
        def lvl1(X):
            for j in range(4):
                A(f"v_pk_add_f32 v[{C+4*j}:{C+4*j+1}], v[{X+8*j}:{X+8*j+1}], v[{X+8*j+4}:{X+8*j+5}]\nv_pk_add_f32 v[{C+4*j+2}:{C+4*j+3}], v[{X+8*j+2}:{X+8*j+3}], v[{X+8*j+6}:{X+8*j+7}]")
        def body():
            A(f"s_lshl_b32 s68, s13, 13\ns_add_u32 s68, s68, {AREA_A + slot*SLOT_SZ}\ns_add_u32 s71, s68, 4096")
            A("v_lshlrev_b32 v44, 4, v0")
            if not final:
                xo = X1_OFF[L] if kind == 0 else X2_OFF
                so = XS1_OFF[L] if kind == 0 else XS2_OFF
                A(f"s_add_u32 s69, s14, {xo}\ns_lshl_b32 s70, s13, 3\ns_add_u32 s70, s70, s14\ns_add_u32 s70, s70, {so}")
                A("v_lshlrev_b32 v45, 5, v0")
            else:
                A("s_mov_b32 s28, s52\ns_mov_b32 s29, s53\ns_mov_b32 s30, 4608\ns_mov_b32 s31, 0x20000")
            A(f"v_lshlrev_b32 v40, 16, v{SL}\nv_and_b32 v41, 0xffff0000, v{SL}")
            if kind == 1:
                A(f"v_lshlrev_b32 v42, 16, v{SL+1}\nv_and_b32 v43, 0xffff0000, v{SL+1}")
            if rgate:
                if kind == 0:
                    A(f"v_lshlrev_b32 v6, 2, v0\ns_add_u32 s15, s14, {LSE_OFF[L]}")
                else:
                    A(f"v_lshlrev_b32 v6, 7, v0\ns_add_u32 s15, s14, {H_OFF[L]}\ns_mov_b64 exec, 0x1ff")
                poll(["buffer_load_dword v4, v6, s[16:19], s15 offen sc1"], [4, 4], 5)
                if kind == 1: fullexec()
                d = rdel[2 * L + kind]
                if d: A(f"s_sleep {d}")
            if rpipe:
                lp = A.L("Lrp"); la = A.L("Lra"); lb = A.L("Lrb"); lc = A.L("Lrc")
                issue(8)
                if rint: A(f"s_sleep {rint}")
                issue(RB)
                A.label(lp)
                A("s_waitcnt vmcnt(8)"); chk_tag(range(8, 40, 4), 46); A(f"s_cbranch_vccz {la}")
                issue(8)
                A("s_waitcnt vmcnt(8)"); chk_tag(range(RB, RB + 32, 4), 46); A(f"s_cbranch_vccz {lb}")
                issue(RB)
                A(f"s_sub_u32 s8, s8, 1\ns_cbranch_scc0 {lp}\ns_mov_b32 s8, 0\ns_waitcnt vmcnt(0)")
                A.label(la)
                stamp(8 + 2 * L + kind, "R poll done")
                lvl1(8); A(f"s_branch {lc}")
                A.label(lb)
                stamp(8 + 2 * L + kind, "R poll done")
                lvl1(RB)
                A.label(lc)
            elif P.get("rprog", 0):
                lp = A.L("Lrp"); ld = A.L("Lrd")
                M = [20, 22, 24, 26, 34, 36, 38, 40]
                def ld1(u): return f"buffer_load_dwordx4 v[{8+4*u}:{11+4*u}], v44, s[16:19], s{68 if u < 4 else 71} offen offset:{1024*(u&3)} sc1"
                for u in range(8): A(ld1(u))
                A.label(lp)
                A("s_waitcnt vmcnt(0)")
                for u in range(8):
                    A(f"v_cmp_ne_u32_sdwa s[{M[u]}:{M[u]+1}], v{8+4*u}, s6 src0_sel:BYTE_0 src1_sel:DWORD")
                A(f"s_or_b64 vcc, s[{M[0]}:{M[0]+1}], s[{M[1]}:{M[1]+1}]")
                for u in range(2, 8): A(f"s_or_b64 vcc, vcc, s[{M[u]}:{M[u]+1}]")
                A(f"s_cbranch_scc0 {ld}")
                if P.get("rslp"): A(f"s_sleep {P['rslp']}")
                for u in range(8):
                    A(f"s_mov_b64 exec, s[{M[u]}:{M[u]+1}]"); A(ld1(u))
                fullexec()
                A(f"s_sub_u32 s8, s8, 1\ns_cbranch_scc0 {lp}\ns_mov_b32 s8, 0\ns_waitcnt vmcnt(0)")
                A.label(ld)
                stamp(8 + 2 * L + kind, "R poll done")
                for u in range(8): A(f"v_and_b32 v{8+4*u}, v55, v{8+4*u}")
                lvl1(8)
            else:
                poll([f"buffer_load_dwordx4 v[{8+4*u}:{11+4*u}], v44, s[16:19], s{68 if u < 4 else 71} offen offset:{1024*(u&3)} {P.get('pld', 'sc1')}" for u in range(8)],
                     range(8, 40, 4), 46, tagged=True, kind="r")
                stamp(8 + 2 * L + kind, "R poll done")
                lvl1(8)
            for st in (4, 8):
                for u in range(C, C + 16, 2 * st):
                    A(f"v_pk_add_f32 v[{u}:{u+1}], v[{u}:{u+1}], v[{u+st}:{u+st+1}]\nv_pk_add_f32 v[{u+2}:{u+3}], v[{u+2}:{u+3}], v[{u+st+2}:{u+st+3}]")
            c0, c1, c2, c3, c4, c5 = range(C, C + 6)
            A(f"v_permlane32_swap_b32 v{c0}, v{c2}\nv_permlane32_swap_b32 v{c1}, v{c3}")
            A(f"v_add_f32 v{c0}, v{c0}, v{c2}\nv_add_f32 v{c1}, v{c1}, v{c3}")
            A(f"v_cvt_pk_bf16_f32 v{c0}, v{c0}, v{c1}")
            A(f"v_and_b32 v{c1}, 0xffff0000, v{c0}\nv_lshlrev_b32 v{c0}, 16, v{c0}")
            if kind == 1:
                A(f"v_add_f32 v{c0}, v{c0}, v42\nv_add_f32 v{c1}, v{c1}, v43\nv_cvt_pk_bf16_f32 v{c0}, v{c0}, v{c1}")
                A(f"v_and_b32 v{c1}, 0xffff0000, v{c0}\nv_lshlrev_b32 v{c0}, 16, v{c0}")
            A(f"v_add_f32 v{c0}, v{c0}, v40\nv_add_f32 v{c1}, v{c1}, v41\nv_cvt_pk_bf16_f32 v{SL}, v{c0}, v{c1}")
            if final:
                A(f"buffer_store_dword v{SL}, v{SL+2}, s[28:31], 0 offen")
                with Cond("e", "s_cmp_eq_u32 s13, 0"):
                    A(f"v_mov_b32 v{c0}, s7\ns_mov_b64 exec, 1")
                    A(f"buffer_store_dword v{c0}, off, s[16:19], 0 sc1")
                    fullexec()
            else:
                hstore(f"buffer_store_dword v{SL}, v{SL+2}, s[16:19], s69 offen")
                A(f"v_lshlrev_b32 v{c0}, 16, v{SL}\nv_and_b32 v{c1}, 0xffff0000, v{SL}")
                A(f"v_add_f32 v{c2}, v{c0}, v{c1}\nv_mul_f32 v{c3}, v{c0}, v{c0}\nv_fmac_f32 v{c3}, v{c1}, v{c1}")
                for mod in ("quad_perm:[1,0,3,2]", "quad_perm:[2,3,0,1]", "row_half_mirror"):
                    A(f"v_add_f32_dpp v{c2}, v{c2}, v{c2} {mod} row_mask:0xf bank_mask:0xf")
                    A(f"v_add_f32_dpp v{c3}, v{c3}, v{c3} {mod} row_mask:0xf bank_mask:0xf")
                A(f"v_mov_b32 v{c4}, v{c2}\nv_mov_b32 v{c5}, v{c3}")
                A(f"v_permlane32_swap_b32 v{c4}, v{c2}\nv_permlane32_swap_b32 v{c5}, v{c3}")
                A(f"v_add_f32 v{c2}, v{c2}, v{c4}\nv_add_f32 v{c3}, v{c3}, v{c5}")
                setexec(0x01010101, 0)
                hstore(f"buffer_store_dwordx2 v[{c2}:{c3}], v45, s[16:19], s70 offen")
                fullexec()
            stamp(4 + 2 * L + kind, "R done")
        with isR():
            if final:
                A("s_and_b32 s68, s13, 7")
                with Cond("fin", "s_cmp_eq_u32 s68, s4"): body()
            else:
                body()

    def stats_poll(so):
        A(f"v_lshlrev_b32 v44, 8, v2\nv_lshl_add_u32 v44, v1, 4, v44\ns_add_u32 s68, s14, {so}")
        for k in range(8, 12): A(f"v_mov_b32 v{k}, 0")
        setexec(0x01ff01ff, 0x01ff01ff)
        poll(["buffer_load_dwordx4 v[8:11], v44, s[16:19], s68 offen sc1"], range(8, 12), 47, kind="s", keep=True)
        fullexec()
        A("v_add_f32 v48, v8, v10\nv_add_f32 v49, v9, v11")
        row_reduce2(48, 49)
        stats_finish()

    def w1_stage(L):
        with isW1():
            with wlt(6):
                tile_addr(45); xfrag_off(46)
                A(f"v_add_u32 v45, {L_T}, v45\ns_mul_i32 s15, s3, 192\ns_add_u32 s15, s15, s14\ns_add_u32 s15, s15, {X1_OFF[L]}")
                poll([f"buffer_load_dwordx4 v[{8+4*s}:{11+4*s}], v46, s[16:19], s15 offen offset:{64*s} sc1" for s in range(3)], range(8, 20), 47, kind="1")
                if L == 0: stamp(10, "w1 polled")
                for s in range(3): mma4(24, 8 + 4 * s, FS[s], s == 0)
                tile_wr(24, 45)
                A("s_waitcnt lgkmcnt(0)\ns_barrier")
            with weq(7):
                A("s_barrier")
            with weq(6):
                A(f"v_mul_u32_u24 v45, 1152, v2\nv_lshl_add_u32 v45, v1, 3, v45\ns_lshl_b32 s69, s12, 7\ns_add_u32 s69, s69, s14\ns_add_u32 s69, s69, {H_OFF[L]}")
                if L == 0:
                    A("s_waitcnt vmcnt(0)")
                    A("v_and_b32 v91, 0xffff0000, v89\nv_lshlrev_b32 v90, 16, v89\nv_and_b32 v89, 0xffff0000, v88\nv_lshlrev_b32 v88, 16, v88")
                A(f"s_mov_b32 s70, {f2u(-2*LOG2E*math.sqrt(2/math.pi)*0.044715):#x}\nv_mov_b32 v50, {f2u(-2*LOG2E*math.sqrt(2/math.pi)):#x}\nv_mov_b32 v52, s70\nv_mov_b32 v53, 1.0")
                A("v_lshlrev_b32 v46, 4, v0")
                stats_poll(XS1_OFF[L])
                A("s_barrier")
                tile_sum(6, L_T, 46, 8)
                if L == 0:
                    tile_sum(6, L_CS, 46, 60)
                    tile_add(6, 8, after=6); tile_add(6, 60)
                else:
                    tile_add(6, 8)
                ln_fix(60)
                for h in (0, 2):
                    A(f"v_pk_fma_f32 v[{8+h}:{9+h}], v[{8+h}:{9+h}], v[48:49], v[{88+h}:{89+h}] op_sel:[0,1,0] op_sel_hi:[1,1,1]")
                for h in (0, 2): A(f"v_pk_mul_f32 v[{12+h}:{13+h}], v[{8+h}:{9+h}], v[{8+h}:{9+h}]")
                for h in (0, 2): A(f"v_pk_fma_f32 v[{12+h}:{13+h}], v[{12+h}:{13+h}], v[52:53], v[50:51] op_sel_hi:[1,0,0]")
                for h in (0, 2): A(f"v_pk_mul_f32 v[{12+h}:{13+h}], v[{12+h}:{13+h}], v[{8+h}:{9+h}]")
                for k in range(4): A(f"v_exp_f32 v{12+k}, v{12+k}")
                for h in (0, 2): A(f"v_pk_add_f32 v[{12+h}:{13+h}], v[{12+h}:{13+h}], v[52:53] op_sel:[0,1] op_sel_hi:[1,1]")
                for k in range(4): A(f"v_rcp_f32 v{12+k}, v{12+k}")
                for h in (0, 2): A(f"v_pk_mul_f32 v[{8+h}:{9+h}], v[{8+h}:{9+h}], v[{12+h}:{13+h}]")
                A("v_cvt_pk_bf16_f32 v8, v8, v9\nv_cvt_pk_bf16_f32 v9, v10, v11")
                hstore("buffer_store_dwordx2 v[8:9], v45, s[16:19], s69 offen")
                stamp(5 + 3 * L, "H stored")

    def w2_stage(L):
        with isWO():
            tile_addr(45); xfrag_off(46)
            A(f"v_add_u32 v45, {L_T}, v45\ns_mul_i32 s15, s11, 576\ns_lshl_b32 s70, s3, 6\ns_add_u32 s15, s15, s70\ns_add_u32 s15, s15, s14\ns_add_u32 s15, s15, {H_OFF[L]}")
            part_addr(SLOT_P2[L])
            with wne(7):
                poll(["buffer_load_dwordx4 v[8:11], v46, s[16:19], s15 offen sc1"], range(8, 12), 47, kind="2")
                if L == 0: stamp(11, "w2 polled")
                mma4(24, 8, FS[1], True)
            with weq(7):
                poll(["buffer_load_dwordx4 v[8:11], v46, s[16:19], s15 offen sc1", "buffer_load_dwordx4 v[12:15], v46, s[16:19], s15 offen offset:64 sc1"], range(8, 16), 47, kind="2")
                mma4(24, 8, FS[1], True)
                mma4(24, 12, FS[2], False)
            tile_wr(24, 45)
            A("s_waitcnt lgkmcnt(0)\ns_barrier")
            with weq(0):
                part_final(10 + 2 * L)

    def wq_stage():
        with wlt(5):
            tile_addr(45); xfrag_off(46)
            A(f"v_add_u32 v45, {L_T}, v45\ns_mul_i32 s15, s66, 288\ns_lshl_b32 s70, s3, 6\ns_add_u32 s15, s15, s70\ns_add_u32 s15, s15, s14\ns_add_u32 s15, s15, {X2_OFF}")
            for k in range(8, 12): A(f"v_mov_b32 v{k}, 0")
            A("s_cmp_eq_u32 s3, 4\ns_cselect_b32 exec_hi, 0, -1")
            poll(["buffer_load_dwordx4 v[8:11], v46, s[16:19], s15 offen sc1"], range(8, 12), 47, kind="w", keep=True)
            fullexec()
            if trace:
                with wne(0): stamp(12, "wq polled")
            mma4(24, 8, WQF, True)
            tile_wr(24, 45)
            A("s_waitcnt lgkmcnt(0)")
        with wne(6):
            A("s_barrier")
        with weq(6):
            A("v_lshlrev_b32 v46, 4, v0")
            stats_poll(XS2_OFF)
            A(f"v_mul_f32 v49, {f2u(QSCALE):#x}, v49")
            q_addr(1)
            A("s_barrier")
            tile_sum(5, L_T, 46, 8); tile_add(5, 8)
            ln_fix(56)
            q_out()
            hstore("buffer_store_dwordx4 v[8:11], v44, s[16:19], s70 offen")
            stamp(7, "Q1 stored")

    def q1_fetch():
        att_pre(1)
        with weq(0):
            q_laddr(1)
            poll(q_loads(1), [8, 12, 16, 20], 4, tagged=True, kind="q")
            q_finish()

    stages = [lambda: att(0), lambda: wo_stage(0), lambda: r_stage(0, 0), lambda: w1_stage(0), lambda: w2_stage(0),
              lambda: r_stage(0, 1), wq_stage, q1_fetch,
              lambda: att(1), lambda: wo_stage(1), lambda: r_stage(1, 0), lambda: w1_stage(1), lambda: w2_stage(1), lambda: r_stage(1, 1)]
    names = ["att0", "wo0", "r00", "w10", "w20", "r01", "wq", "q1", "att1", "wo1", "r10", "w11", "w21", "r11"]
    for k, st in enumerate(stages):
        if k >= stop: break
        A.c(f"======== stage {names[k]} ========")
        st()
    if sonly: A.label("L_trace")
    if trace:
        A("s_waitcnt lgkmcnt(0)\nv_mov_b32 v8, 0")
        for k in range(14):
            A(f"v_writelane_b32 v8, s{74+2*k}, {k}")
        A(f"s_lshl_b32 s68, s2, 3\ns_add_u32 s68, s68, s3\ns_lshl_b32 s68, s68, 6\ns_add_u32 s68, s68, {TRACE}\nv_lshlrev_b32 v9, 2, v0")
        A("s_mov_b64 exec, 0xffff\nbuffer_store_dword v8, v9, s[16:19], s68 offen")
    A.label("L_end")
    A("s_endpgm")
    flush_deferred()
    A.raw(f""".section .rodata,"a"
.p2align 6
.amdhsa_kernel {NAME}_kernel
  .amdhsa_next_free_vgpr 256
  .amdhsa_next_free_sgpr 102
  .amdhsa_accum_offset 256
  .amdhsa_group_segment_fixed_size 0
  .amdhsa_kernarg_size 104
  .amdhsa_user_sgpr_count 2
  .amdhsa_user_sgpr_kernarg_segment_ptr 1
  .amdhsa_system_sgpr_workgroup_id_x 1
.end_amdhsa_kernel""")
    return A

if __name__ == "__main__":
    import json
    P = json.loads(sys.argv[2]) if len(sys.argv) > 2 else {}
    A = gen(P)
    open(sys.argv[1], "w").write(A.text())
    print("instrs", len(A.ins), "nop states", A.nnops)
```
